```python
import torch

def _softmax(x, axis=-1):
    return torch.softmax(x, dim=axis)
def _gelu(x):
    return torch.nn.functional.gelu(x, approximate="tanh")
def _silu(x):
    return torch.nn.functional.silu(x)
def _sigmoid(x):
    return torch.sigmoid(x)
def _layernorm(x, axis=-1, eps=1e-5):
    m = x.mean(dim=axis, keepdim=True)
    v = x.var(dim=axis, keepdim=True, unbiased=False)
    return (x - m) / torch.sqrt(v + eps)
def _scatter_add(tgt, idx, src, axis=0):
    return tgt.clone().index_add_(axis, idx, src)
def _segment_sum(src, seg, n):
    out = torch.zeros((n,) + src.shape[1:], dtype=src.dtype)
    return out.index_add_(0, seg, src)
def _pad(x, pw):
    flat = tuple(v for pair in reversed(pw) for v in pair)
    return torch.nn.functional.pad(x, flat)

kernel_name = 'standalone__linear_kernel_rfa__prompt'

def setup_inputs():

    _w = (lambda a: (lambda t: t.to(torch.bfloat16) if t.is_floating_point() else t)(torch.as_tensor(a)))
    B, H, Sq, Sk, D, M = 1, 16, 2048, 2048, 256, 8
    return {
        "q": _w((lambda *s: torch.randn(*s, dtype=torch.bfloat16) * 0.1)(B, H, Sq, D)),
        "k": _w((lambda *s: torch.randn(*s, dtype=torch.bfloat16) * 1.6)(B, H, Sk, D)),
        "v": _w((lambda *s: torch.randn(*s, dtype=torch.bfloat16) * 1.6)(B, H, Sk, D)),
        "omega": _w((lambda *s: torch.randn(*s, dtype=torch.bfloat16) * 1.6)(M, D)),
    }

def reference(q, k, v, omega):
    d = q.shape[-1]
    m = omega.shape[0]
    scale = float(d) ** -0.25
    qs = q * scale
    ks = k * scale
    q_proj = torch.einsum("bhsd,md->bhsm", qs, omega)
    k_proj = torch.einsum("bhsd,md->bhsm", ks, omega)
    q_sq = 0.5 * torch.einsum("bhsd,bhsd->bhs", qs, qs)[..., None]
    k_sq = 0.5 * torch.einsum("bhsd,bhsd->bhs", ks, ks)[..., None]
    inv_sqrt_m = float(m) ** -0.5
    phi_q = torch.exp(q_proj - q_sq) * inv_sqrt_m + 1e-6
    phi_k = torch.exp(k_proj - k_sq) * inv_sqrt_m + 1e-6
    kv = torch.einsum("bhsm,bhsd->bhmd", phi_k, v)
    z  = torch.einsum("bhsm->bhm", phi_k)
    num = torch.einsum("bhqm,bhmd->bhqd", phi_q, kv)
    den = torch.einsum("bhqm,bhm->bhq", phi_q, z)[..., None] + 1e-6
    return num / den
```

```python
import re

REG_RE = re.compile(r'(?<![\w])([vsa])\[(\d+):(\d+)\]|(?<![\w\[])([vsa])(\d+)(?![\w])')

def regs_of(tok):
    out = []
    for m in REG_RE.finditer(tok):
        if m.group(1):
            out += [(m.group(1), i) for i in range(int(m.group(2)), int(m.group(3)) + 1)]
        else:
            out.append((m.group(4), int(m.group(5))))
    if re.search(r'(?<![\w])vcc(?![\w])', tok):
        out += [('s', 'vcc_lo'), ('s', 'vcc_hi')]
    if re.search(r'(?<![\w])m0(?![\w])', tok):
        out.append(('s', 'm0'))
    if re.search(r'(?<![\w])exec(?![\w])', tok):
        out.append(('s', 'exec'))
    return out

TRANS = ('v_exp_f32', 'v_log_f32', 'v_rcp_f32', 'v_rsq_f32', 'v_sqrt_f32', 'v_sin_f32', 'v_cos_f32')

def mfma_passes(op):
    if '32x32x16' in op or '32x32x8' in op:
        return 8
    if '16x16x32' in op or '16x16x16' in op:
        return 4
    if '4x4x4' in op:
        return 2
    raise ValueError(op)

class Ins:
    def __init__(self, text):
        self.text = text
        t = text.split(';')[0].strip()
        self.code = t
        self.is_ins = bool(t) and not t.endswith(':') and not t.startswith('.')
        self.op = t.split()[0] if self.is_ins else ''
        self.dst, self.src = set(), set()
        self.srcA = self.srcB = self.srcC = set()
        self.kind = 'other'
        if not self.is_ins:
            return
        rest = t[len(self.op):].strip()
        ops = [x.strip() for x in rest.split(',')] if rest else []
        op = self.op
        R = lambda i: set(regs_of(ops[i])) if i < len(ops) else set()
        allr = lambda a: set().union(*[R(i) for i in range(a, len(ops))]) if len(ops) > a else set()
        if op.startswith('v_mfma'):
            self.kind = 'mfma'
            self.dst = R(0); self.srcA = R(1); self.srcB = R(2); self.srcC = R(3)
            self.src = self.srcA | self.srcB | self.srcC
            self.passes = mfma_passes(op)
        elif op.startswith('v_permlane') and 'swap' in op:
            self.kind = 'permlane'
            self.dst = R(0) | R(1); self.src = R(0) | R(1)
        elif op.startswith('v_readfirstlane') or op.startswith('v_readlane'):
            self.kind = 'readlane'
            self.dst = R(0); self.src = allr(1)
        elif op.startswith('v_cmpx'):
            self.kind = 'valu'
            self.dst = R(0) | {('s', 'exec')}; self.src = allr(1)
        elif op.startswith('v_'):
            self.kind = 'valu'
            self.dst = R(0); self.src = allr(1)
            if op.startswith('v_add_co') or op.startswith('v_addc_co') or op.startswith('v_sub_co'):
                self.dst |= R(1); self.src = allr(2)
            if op.startswith('v_fmac') or op.startswith('v_pk_fmac') or op.startswith('v_dot2c'):
                self.src |= R(0)
            if op.startswith('v_writelane'):
                self.src |= R(0)
            if op.startswith('v_cndmask_b32') and len(ops) == 3:
                self.src |= {('s', 'vcc_lo'), ('s', 'vcc_hi')}
            self.dpp = ('dpp' in op) or any(k in t for k in ('row_ror', 'row_shr', 'row_shl', 'quad_perm', 'row_newbcast', 'row_bcast', 'row_mirror', 'row_half_mirror'))
            if self.dpp:
                self.src |= R(0)
            self.trans = any(op.startswith(x) for x in TRANS)
            self.sdwa = 'sdwa' in op or 'dst_sel' in t or 'op_sel' in t
        elif op.startswith('buffer_') or op.startswith('global_'):
            self.kind = 'vmem'
            lds = bool(re.search(r'\blds\b', t)) or 'load_lds' in op
            self.lds = lds
            if 'store' in op or ('atomic' in op):
                self.store = True
                self.src = allr(0)
                if op.startswith('buffer_'):
                    self.data = R(0)
                else:
                    self.data = R(1)
                if 'atomic' in op and 'sc0' in t:
                    self.dst = R(0)
                self.wide = 'x3' in op or 'x4' in op
            elif op in ('buffer_wbl2', 'buffer_inv'):
                self.store = False
            else:
                self.store = False
                if lds:
                    self.src = allr(0) | {('s', 'm0')}
                else:
                    self.dst = R(0); self.src = allr(1)
        elif op.startswith('ds_'):
            self.kind = 'ds'
            if 'write' in op or ('add' in op and 'rtn' not in op):
                self.src = allr(0)
            else:
                self.dst = R(0); self.src = allr(1)
        elif op.startswith('s_'):
            self.kind = 'salu'
            if op.startswith('s_cmp') or op.startswith('s_bitcmp') or op in ('s_waitcnt', 's_barrier', 's_nop', 's_endpgm', 's_sleep', 's_setprio') or op.startswith('s_cbranch') or op == 's_branch':
                self.src = allr(0)
            else:
                self.dst = R(0); self.src = allr(1)
                if 'saveexec' in op:
                    self.dst |= {('s', 'exec')}

    def states(self):
        if not self.is_ins:
            return 0
        if self.op == 's_nop':
            return int(self.code.split()[1], 0) + 1
        return 1

def V(s):
    return {r for r in s if r[0] in 'va'}
def S(s):
    return {r for r in s if r[0] == 's'}

def required(p, c):
    need = 0
    isvalu = lambda x: x.kind in ('valu', 'permlane', 'readlane')
    if isvalu(p):
        pv, ps = V(p.dst), S(p.dst)
        if c.kind == 'mfma' and pv & c.src:
            need = max(need, 2)
        if c.kind == 'mfma' and ('s', 'exec') in ps:
            need = max(need, 4)
        if c.kind == 'permlane' and pv & c.src:
            need = max(need, 2)
        if c.kind == 'readlane' and pv & V(c.src):
            need = max(need, 1)
        if c.kind == 'valu' and getattr(c, 'dpp', False) and pv & c.src:
            need = max(need, 2)
        if c.kind == 'valu' and getattr(c, 'dpp', False) and ('s', 'exec') in ps:
            need = max(need, 5)
        if c.kind == 'vmem' and ps & c.src:
            need = max(need, 5)
        if isvalu(c) and ps & S(c.src):
            need = max(need, 4 if c.kind == 'readlane' or c.op.startswith('v_writelane') else 2)
        if c.kind in ('readlane', 'permlane') and ('s', 'exec') in ps:
            need = max(need, 4)
        if c.kind == 'salu' and ps & c.src:
            need = max(need, 2)
        if getattr(p, 'trans', False) and isvalu(c) and not getattr(c, 'trans', False) and pv & c.src:
            need = max(need, 1)
        if getattr(p, 'trans', False) and c.kind in ('ds', 'vmem') and pv & c.src:
            need = max(need, 1)
        if getattr(p, 'sdwa', False) and isvalu(c) and pv & (c.src | c.dst):
            need = max(need, 1)
    if p.kind == 'mfma':
        n = p.passes
        rd = {2: 5, 4: 8, 8: 12, 16: 20}[n]
        ov = {2: 4, 4: 6, 8: 10, 16: 18}[n]
        war = {2: 1, 4: 3, 8: 7, 16: 15}[n]
        if c.kind == 'mfma':
            if p.dst & (c.srcA | c.srcB):
                need = max(need, rd)
            if p.dst & c.srcC:
                if p.dst == c.srcC and p.passes == c.passes:
                    need = max(need, 2 if n == 2 else 0)
                else:
                    need = max(need, ov)
            elif p.dst & c.dst:
                need = max(need, rd)
        else:
            if p.dst & (c.src | c.dst):
                need = max(need, rd)
            if isvalu(c) and p.srcC & c.dst:
                need = max(need, war)
    if p.kind == 'vmem' and getattr(p, 'store', False) and getattr(p, 'wide', False):
        if p.data & c.dst:
            need = max(need, 2)
    if p.kind == 'salu' and ('s', 'm0') in p.dst and c.kind == 'vmem' and getattr(c, 'lds', False):
        need = max(need, 1)
    if p.kind == 'salu' and ('s', 'exec') in p.dst and c.kind == 'valu' and getattr(c, 'dpp', False):
        need = max(need, 0)
    return need

def pad_hazards(lines, verbose=False):
    out = []
    window = []
    total = 0
    for ln in lines:
        ins = Ins(ln)
        if ins.is_ins:
            dist = 0
            need_pad = 0
            for p in reversed(window):
                r = required(p, ins)
                if r > dist:
                    need_pad = max(need_pad, r - dist)
                dist += p.states()
                if dist >= 24:
                    break
            while need_pad > 0:
                k = min(need_pad, 16)
                nop = Ins('s_nop %d' % (k - 1))
                out.append('    s_nop %d' % (k - 1))
                window.append(nop)
                need_pad -= k
                total += k
            window.append(ins)
            if len(window) > 64:
                window = window[-40:]
        out.append(ln)
    if verbose:
        print('padded', total, 'wait states')
    return out

class Asm:
    def __init__(self):
        self.lines = []
    def __call__(self, text):
        for ln in text.split('\n'):
            ln = ln.rstrip()
            if not ln.strip():
                continue
            s = ln.strip()
            if s.endswith(':') or s.startswith('.') or s.startswith(';'):
                self.lines.append(s)
            else:
                self.lines.append('    ' + s)
    def text(self, pad=True):
        ls = pad_hazards(self.lines) if pad else self.lines
        return '\n'.join(ls) + '\n'

def vr(base, n=1):
    return 'v%d' % base if n == 1 else 'v[%d:%d]' % (base, base + n - 1)
def sr(base, n=1):
    return 's%d' % base if n == 1 else 's[%d:%d]' % (base, base + n - 1)

def descriptor(name, vgpr, sgpr=96, accum=None):
    if accum is None:
        accum = min(256, (vgpr + 3) // 4 * 4)
    return f""".section .rodata,"a"
.p2align 6
.amdhsa_kernel {name}
  .amdhsa_next_free_vgpr {vgpr}
  .amdhsa_next_free_sgpr {sgpr}
  .amdhsa_accum_offset {accum}
  .amdhsa_group_segment_fixed_size 0
  .amdhsa_kernarg_size 56
  .amdhsa_user_sgpr_count 2
  .amdhsa_user_sgpr_kernarg_segment_ptr 1
  .amdhsa_system_sgpr_workgroup_id_x 1
  .amdhsa_float_denorm_mode_32 3
.end_amdhsa_kernel
"""
```

```python
import sys
from asmlib import *

NAME = 'standalone__linear_kernel_rfa__prompt'
HEADER = """; Kernarg layout for this problem (56 bytes, ptrs only, base s[0:1]):
"""

sW, sH, sJ, sBase, sT, sU = 3, 18, 19, 48, 49, 50
SK, SV, SQ, SO, SOUT, SWS, SDBG = 20, 24, 28, 32, 36, 40, 44
sPub = 51
sHb = 52
sCnt = 53
PSTRIDE = 8192 + 256

L_PHI, L_KVB, L_V = 0, 4096, 8192
LDS_BYTES = L_V + 65536

vN, vG, vL, vT0, vT1, vKA, vOA, vVA = 1, 2, 3, 4, 5, 6, 7, 8
vM0, vM1 = 9, 10
vTR0, vTR1 = 11, 12
vX = 13
TA, TB = 16, 20
vP, vGm, vD2 = 24, 28, 32
vPhi = 36
vOnes = 38
vRcp = 42
vZ = 46
OM, KR, QR = 48, 80, 112
GA = 144
KVB = 208

LOG2E, CMUL, EPS = '0x3fb8aa3b', '0x3eb504f3', '0x358637bd'

def prologue(a, endlabel):
    a(f"""
s_cmp_ge_u32 s2, 256
s_cbranch_scc1 {endlabel}
s_load_dwordx8 s[4:11], s[0:1], 0
s_load_dwordx4 s[12:15], s[0:1], 32
s_load_dwordx2 s[16:17], s[0:1], 48
v_lshrrev_b32 v{vT0}, 6, v0
v_and_b32 v{vL}, 63, v0
v_and_b32 v{vN}, 15, v0
v_readfirstlane_b32 s{sW}, v{vT0}
v_bfe_u32 v{vG}, v0, 4, 2
s_and_b32 s{sH}, s2, 15
s_lshr_b32 s{sJ}, s2, 4
s_lshl_b32 s{sT}, s{sH}, 20
s_lshl_b32 s{sU}, s{sJ}, 16
s_or_b32 s{sBase}, s{sT}, s{sU}
s_mul_i32 s{sHb}, s{sH}, {16*PSTRIDE}
s_mul_i32 s{sT}, s{sJ}, {PSTRIDE}
s_add_u32 s{sPub}, s{sHb}, s{sT}
v_lshlrev_b32 v{vOA}, 9, v{vN}
v_lshl_add_u32 v{vOA}, v{vG}, 4, v{vOA}
v_lshl_add_u32 v{vKA}, v{vT0}, 13, v{vOA}
s_waitcnt lgkmcnt(0)
""")
    for srd, p in ((SQ, 4), (SK, 6), (SV, 8), (SOUT, 12)):
        a(f"""
s_add_u32 s{srd}, s{p}, s{sBase}
s_addc_u32 s{srd+1}, s{p+1}, 0
s_mov_b32 s{srd+2}, 65536
s_mov_b32 s{srd+3}, 0x20000
""")
    for srd, p, n in ((SO, 10, 4096), (SDBG, 14, 256), (SWS, 16, 256*PSTRIDE)):
        a(f"""
s_mov_b32 s{srd}, s{p}
s_mov_b32 s{srd+1}, s{p+1}
s_mov_b32 s{srd+2}, {n}
s_mov_b32 s{srd+3}, 0x20000
""")

def load_frags(a, base, addr, srd, flags=''):
    for t in range(8):
        a(f"buffer_load_dwordx4 {vr(base+4*t,4)}, v{addr}, {sr(srd,4)}, 0 offen offset:{64*t} {flags}")

def v_dma(a, flags=''):
    a(f"""
v_lshrrev_b32 v{vT0}, 5, v0          ; 2w + (l>>5)
v_and_b32 v{vT1}, 7, v{vT0}
v_lshlrev_b32 v{vT1}, 1, v{vT1}
v_and_b32 v{vVA}, 31, v0
v_xor_b32 v{vVA}, v{vVA}, v{vT1}
v_lshlrev_b32 v{vVA}, 4, v{vVA}
v_lshl_add_u32 v{vVA}, v{vT0}, 9, v{vVA}
s_lshl_b32 s{sT}, s{sW}, 10
s_add_u32 s{sT}, s{sT}, {L_V}
s_mov_b32 s{sU}, 0
""")
    for i in range(8):
        a(f"""
s_mov_b32 m0, s{sT}
s_add_u32 s{sT}, s{sT}, 8192
buffer_load_dwordx4 v{vVA}, {sr(SV,4)}, s{sU} offen lds {flags}
s_add_u32 s{sU}, s{sU}, 8192
""")

def consts(a):
    a(f"""
v_lshlrev_b32 v{vT0}, 2, v{vG}
v_sub_u32 v{vT0}, v{vN}, v{vT0}        ; d = n - 4g
v_mov_b32 v{vT1}, 0xffff
v_mov_b32 v{vX}, 0xffff0000
v_cmp_eq_u32 vcc, 0, v{vT0}
v_cndmask_b32 v{vM0}, 0, v{vT1}, vcc
v_cmp_eq_u32 vcc, 1, v{vT0}
v_cndmask_b32 v{vM0}, v{vM0}, v{vX}, vcc
v_cmp_eq_u32 vcc, 2, v{vT0}
v_cndmask_b32 v{vM1}, 0, v{vT1}, vcc
v_cmp_eq_u32 vcc, 3, v{vT0}
v_cndmask_b32 v{vM1}, v{vM1}, v{vX}, vcc
v_and_b32 v{TA}, 0x3e803e80, v{vM0}
v_and_b32 v{TA+1}, 0x3e803e80, v{vM1}
""")

def phi(a, R, isq, waits):
    for t in range(8):
        if waits[t] is not None:
            a(f"s_waitcnt vmcnt({waits[t]})")
        c1 = '0' if t == 0 else vr(vP, 4)
        c2 = '0' if t == 0 else vr(vGm, 4)
        if isq:
            a(f"v_mfma_f32_16x16x32_bf16 {vr(vP,4)}, {vr(OM+4*t,4)}, {vr(R+4*t,4)}, {c1}")
        else:
            a(f"v_mfma_f32_16x16x32_bf16 {vr(vP,4)}, {vr(R+4*t,4)}, {vr(OM+4*t,4)}, {c1}")
        a(f"v_mfma_f32_16x16x32_bf16 {vr(vGm,4)}, {vr(R+4*t,4)}, {vr(R+4*t,4)}, {c2}")
    gd, cc = (TB+2, TA+2) if isq else (TA+2, TB+2)
    a(f"""
v_mov_b32 v{cc}, 0xbd00bd00
v_mov_b32 v{cc+1}, 0xbd00bd00
v_cvt_pk_bf16_f32 v{TB}, v{vP}, v{vP+1}
v_cvt_pk_bf16_f32 v{TB+1}, v{vP+2}, v{vP+3}
v_cvt_pk_bf16_f32 v{gd}, v{vGm}, v{vGm+1}
v_cvt_pk_bf16_f32 v{gd+1}, v{vGm+2}, v{vGm+3}
v_and_b32 v{gd}, v{gd}, v{vM0}
v_and_b32 v{gd+1}, v{gd+1}, v{vM1}
v_mfma_f32_16x16x32_bf16 {vr(vD2,4)}, {vr(TA,4)}, {vr(TB,4)}, 0
""")
    for op in (lambda r: f"v_cvt_pk_bf16_f32 v{r}, 0, v{r}",
               lambda r: f"v_mul_f32 v{r}, {LOG2E}, v{r}",
               lambda r: f"v_exp_f32 v{r}, v{r}",
               lambda r: f"v_cvt_pk_bf16_f32 v{r}, 0, v{r}",
               lambda r: f"v_mul_f32 v{r}, {CMUL}, v{r}",
               lambda r: f"v_cvt_pk_bf16_f32 v{r}, 0, v{r}",
               lambda r: f"v_add_f32 v{r}, {EPS}, v{r}"):
        for r in range(4):
            a(op(vD2 + r))
    a(f"""
v_cvt_pk_bf16_f32 v{vPhi}, v{vD2}, v{vD2+1}
v_cvt_pk_bf16_f32 v{vPhi+1}, v{vD2+2}, v{vD2+3}
""")
    if isq:
        a(f"""
v_cmp_gt_u32 vcc, 32, v{vL}
v_cndmask_b32 v{vPhi}, 0, v{vPhi}, vcc
v_cndmask_b32 v{vPhi+1}, 0, v{vPhi+1}, vcc
""")

def phik_to_lds(a):
    a(f"""
s_lshr_b32 s{sT}, s{sW}, 1
s_lshl_b32 s{sT}, s{sT}, 10
s_and_b32 s{sU}, s{sW}, 1
s_lshl_b32 s{sU}, s{sU}, 3
s_add_u32 s{sT}, s{sT}, s{sU}
v_lshl_add_u32 v{vT0}, v{vL}, 4, s{sT}
ds_write_b64 v{vT0}, {vr(vPhi,2)} offset:{L_PHI}
""")

def v_phase(a, AF, BF, D0, D1, DZ):
    a(f"""
v_lshrrev_b32 v{vT0}, 2, v{vL}         ; rowl = l>>2  (= 4g + (n>>2))
v_and_b32 v{vT1}, 7, v{vT0}
s_lshl_b32 s{sT}, s{sW}, 1
v_xor_b32 v{vT1}, s{sT}, v{vT1}
v_lshlrev_b32 v{vT1}, 5, v{vT1}
v_lshl_add_u32 v{vTR0}, v{vT0}, 9, v{vT1}
v_and_b32 v{vT1}, 3, v{vL}
v_lshl_add_u32 v{vTR0}, v{vT1}, 3, v{vTR0}
v_add_u32 v{vTR0}, {L_V}, v{vTR0}
v_xor_b32 v{vTR1}, 32, v{vTR0}
v_lshlrev_b32 v{vT0}, 4, v{vL}
v_mov_b32 v{vOnes}, 0x3f803f80
v_mov_b32 v{vOnes+1}, 0x3f803f80
v_mov_b32 v{vOnes+2}, 0x3f803f80
v_mov_b32 v{vOnes+3}, 0x3f803f80
""")
    for s in range(4):
        a(f"ds_read_b128 {vr(AF+4*s,4)}, v{vT0} offset:{L_PHI+1024*s}")
    for s in range(4):
        for u in range(2):
            for hh in range(2):
                a(f"ds_read_b64_tr_b16 {vr(BF+8*s+4*u+2*hh,2)}, v{vTR0+u} offset:{(32*s+16*hh)*512}")
        if s == 1:
            a("s_waitcnt lgkmcnt(4)")
            v_mf(a, 0, AF, BF, D0, D1, DZ)
    a("s_waitcnt lgkmcnt(8)")
    v_mf(a, 1, AF, BF, D0, D1, DZ)
    a("s_waitcnt lgkmcnt(4)")
    v_mf(a, 2, AF, BF, D0, D1, DZ)
    a("s_waitcnt lgkmcnt(0)")
    v_mf(a, 3, AF, BF, D0, D1, DZ)

def v_mf(a, s, AF, BF, D0, D1, DZ):
    c = lambda D: '0' if s == 0 else vr(D, 4)
    a(f"""
v_mfma_f32_16x16x32_bf16 {vr(D0,4)}, {vr(AF+4*s,4)}, {vr(BF+8*s,4)}, {c(D0)}
v_mfma_f32_16x16x32_bf16 {vr(D1,4)}, {vr(AF+4*s,4)}, {vr(BF+8*s+4,4)}, {c(D1)}
v_mfma_f32_16x16x32_bf16 {vr(DZ,4)}, {vr(AF+4*s,4)}, {vr(vOnes,4)}, {c(DZ)}
""")

def publish(a, D0, D1, DZ, flags):
    for r in range(4):
        a(f"v_permlane32_swap_b32 v{D0+r}, v{D1+r}")
    a(f"""
v_lshlrev_b32 v{vT0}, 4, v0
buffer_store_dwordx4 {vr(D0,4)}, v{vT0}, {sr(SWS,4)}, s{sPub} offen {flags}
v_and_b32 v{vT1}, 0x1ef, v0
v_cmp_eq_u32 vcc, 0, v{vT1}
v_lshlrev_b32 v{vT1}, 4, v{vG}
v_add_u32 v{vT1}, 8192, v{vT1}
v_mov_b32 v{vX}, 0x7fffff00
v_cndmask_b32 v{vT1}, v{vX}, v{vT1}, vcc
buffer_store_dwordx4 {vr(DZ,4)}, v{vT1}, {sr(SWS,4)}, s{sPub} offen {flags}
""")

def gather(a, flags):
    a(f"""
v_lshlrev_b32 v{vT0}, 4, v0
s_mov_b32 s{sT}, s{sHb}
""")
    for p in range(16):
        a(f"buffer_load_dwordx4 {vr(GA+4*p,4)}, v{vT0}, {sr(SWS,4)}, s{sT} offen {flags}")
        if p < 15:
            a(f"s_add_u32 s{sT}, s{sT}, {PSTRIDE}")
    a(f"""
v_mul_u32_u24 v{vT1}, {PSTRIDE}, v{vN}
v_and_b32 v{vX}, 1, v{vG}
v_lshl_add_u32 v{vT1}, v{vX}, 4, v{vT1}
v_add_u32 v{vT1}, 8192, v{vT1}
buffer_load_dwordx4 {vr(vRcp,4)}, v{vT1}, {sr(SWS,4)}, s{sHb} offen {flags}
""")
    a(f"""
v_bfe_u32 v{vT0}, v{vN}, 1, 2          ; c>>1
v_lshlrev_b32 v{vT0}, 9, v{vT0}
v_lshl_add_u32 v{vT0}, v{vX}, 8, v{vT0} ; + g2*256
v_lshrrev_b32 v{vT1}, 5, v{vL}         ; upper
v_lshl_add_u32 v{vT0}, v{vT1}, 5, v{vT0}
v_lshrrev_b32 v{vT1}, 3, v{vN}
v_lshl_add_u32 v{vT0}, v{vT1}, 4, v{vT0}
v_and_b32 v{vT1}, 1, v{vN}
v_lshl_add_u32 v{vT0}, v{vT1}, 3, v{vT0}
s_lshr_b32 s{sT}, s{sW}, 2
s_lshl_b32 s{sT}, s{sT}, 11
s_and_b32 s{sU}, s{sW}, 3
s_lshl_b32 s{sU}, s{sU}, 6
s_add_u32 s{sT}, s{sT}, s{sU}
v_add_u32 v{vT0}, s{sT}, v{vT0}
""")
    for p in range(1, 16):
        a(f"s_waitcnt vmcnt({16-p})")
        a(f"v_pk_add_f32 {vr(GA,2)}, {vr(GA,2)}, {vr(GA+4*p,2)}")
        a(f"v_pk_add_f32 {vr(GA+2,2)}, {vr(GA+2,2)}, {vr(GA+4*p+2,2)}")
    a(f"""
v_cvt_pk_bf16_f32 v{GA+4}, v{GA}, v{GA+1}
v_cvt_pk_bf16_f32 v{GA+5}, v{GA+2}, v{GA+3}
ds_write_b64 v{vT0}, {vr(GA+4,2)} offset:{L_KVB}
s_waitcnt vmcnt(0)
""")
    for sh in (8, 4, 2, 1):
        for r in range(4):
            a(f"v_add_f32_dpp v{vRcp+r}, v{vRcp+r}, v{vRcp+r} row_ror:{sh} row_mask:0xf bank_mask:0xf")
    a(f"""
v_cvt_pk_bf16_f32 v{vZ}, v{vRcp}, v{vRcp+1}
v_cvt_pk_bf16_f32 v{vZ+1}, v{vRcp+2}, v{vRcp+3}
v_and_b32 v{vT0}, 31, v{vL}
v_lshlrev_b32 v{vT0}, 4, v{vT0}
s_waitcnt lgkmcnt(0)
s_barrier
""")
    for i in range(8):
        a(f"ds_read_b128 {vr(KVB+4*i,4)}, v{vT0} offset:{L_KVB+512*i}")

def out_phase(a, ACC, PK, flags=''):
    a(f"""
v_mfma_f32_16x16x16_bf16 {vr(vD2,4)}, {vr(vPhi,2)}, {vr(vZ,2)}, 0
v_lshrrev_b32 v{vT0}, 4, v0           ; 4w + g
v_lshlrev_b32 v{vT0}, 11, v{vT0}
v_lshl_add_u32 v{vT0}, v{vN}, 4, v{vT0}
""")
    for r in range(4):
        a(f"v_cvt_pk_bf16_f32 v{vRcp+r}, 0, v{vD2+r}")
    for r in range(4):
        a(f"v_add_f32 v{vRcp+r}, {EPS}, v{vRcp+r}")
    for r in range(4):
        a(f"v_cvt_pk_bf16_f32 v{vRcp+r}, 0, v{vRcp+r}")
    for r in range(4):
        a(f"v_rcp_f32 v{vRcp+r}, v{vRcp+r}")
    for hf in range(2):
        for c in range(8):
            i = hf*4 + (c >> 1)
            if c % 2 == 0:
                a(f"s_waitcnt lgkmcnt({7-i})")
            a(f"v_mfma_f32_16x16x16_bf16 {vr(ACC+32*hf+4*c,4)}, {vr(vPhi,2)}, {vr(KVB+4*i+2*(c&1),2)}, 0")
    for hf in range(2):
        for r in range(4):
            regs = [ACC+32*hf+4*c+r for c in range(8)]
            for x in regs:
                a(f"v_cvt_pk_bf16_f32 v{x}, 0, v{x}")
            for x in regs:
                a(f"v_mul_f32 v{x}, v{vRcp+r}, v{x}")
            pk = PK + 4*((hf*4+r) % 4)
            for c2 in range(4):
                a(f"v_cvt_pk_bf16_f32 v{pk+c2}, v{regs[2*c2]}, v{regs[2*c2+1]}")
            a(f"buffer_store_dwordx4 {vr(pk,4)}, v{vT0}, {sr(SOUT,4)}, 0 offen offset:{r*512+hf*256} {flags}")

def kernel_head(a, name):
    a(f""".globl {name}
.p2align 8
.type {name},@function
{name}:""")

def two_kernel():
    a = Asm()
    k1, k2 = 'rfa_kv_kernel', 'rfa_out_kernel'
    a('.amdgcn_target "amdgcn-amd-amdhsa--gfx950"\n.text')
    kernel_head(a, k1)
    prologue(a, 'L_end1')
    load_frags(a, OM, vOA, SO)
    load_frags(a, KR, vKA, SK)
    v_dma(a)
    consts(a)
    phi(a, KR, False, [15-t for t in range(8)])
    phik_to_lds(a)
    a("s_waitcnt vmcnt(0) lgkmcnt(0)\ns_barrier")
    v_phase(a, QR, KR, vP, vGm, vD2)
    publish(a, vP, vGm, vD2, '')
    a("L_end1:\ns_endpgm")
    kernel_head(a, k2)
    prologue(a, 'L_end2')
    load_frags(a, OM, vOA, SO)
    load_frags(a, QR, vKA, SQ)
    consts(a)
    phi(a, QR, True, [7-t for t in range(8)])
    gather(a, '')
    out_phase(a, OM, GA)
    a("L_end2:\ns_endpgm")
    hdr = HEADER + f"; @launch kernel={k1} grid=(256,1,1) block=(512,1,1) lds={LDS_BYTES}\n; @launch kernel={k2} grid=(256,1,1) block=(512,1,1) lds={LDS_BYTES}\n"
    return hdr + a.text() + descriptor(k1, 240) + descriptor(k2, 240)

def fused():
    a = Asm()
    k = NAME + '_kernel'
    a('.amdgcn_target "amdgcn-amd-amdhsa--gfx950"\n.text')
    kernel_head(a, k)
    prologue(a, 'L_end')
    load_frags(a, OM, vOA, SO)
    load_frags(a, KR, vKA, SK)
    v_dma(a)
    load_frags(a, QR, vKA, SQ)
    consts(a)
    phi(a, KR, False, [23-t for t in range(8)])
    phik_to_lds(a)
    a("s_waitcnt vmcnt(8) lgkmcnt(0)\ns_barrier")
    v_phase(a, GA, KR, vP, vGm, vD2)
    publish(a, vP, vGm, vD2, 'sc1')
    a("s_nop 1")
    phi(a, QR, True, [9-t for t in range(8)])
    a(f"""
s_waitcnt vmcnt(0)
s_barrier
s_cmp_lg_u32 s{sW}, 0
s_cbranch_scc1 L_synced
s_lshl_b32 s{sT}, s{sH}, 2
v_mov_b32 v{vT0}, 1
v_mov_b32 v{vT1}, 0
s_mov_b64 exec, 1
buffer_atomic_add v{vT0}, v{vT1}, {sr(SDBG,4)}, s{sT} offen
s_mov_b32 s{sCnt}, 0
L_poll:
buffer_load_dword v{vT0}, v{vT1}, {sr(SDBG,4)}, s{sT} offen sc1
s_add_u32 s{sCnt}, s{sCnt}, 1
s_waitcnt vmcnt(0)
v_readfirstlane_b32 s{sU}, v{vT0}
s_cmp_ge_u32 s{sCnt}, 0x100000
s_cbranch_scc1 L_polled
s_cmp_lt_u32 s{sU}, 16
s_cbranch_scc1 L_poll
L_polled:
s_mov_b64 exec, -1
L_synced:
s_barrier
""")
    gather(a, 'sc1')
    out_phase(a, OM, GA)
    a("L_end:\ns_endpgm")
    hdr = HEADER + f"; @launch grid=(256,1,1) block=(512,1,1) lds={LDS_BYTES}\n"
    return hdr + a.text() + descriptor(k, 240)

if __name__ == '__main__':
    open('two1.s', 'w').write(two_kernel())
    open('fused1.s', 'w').write(fused())
```

```python
import sys
from asmlib import *

NAME = 'standalone__linear_kernel_rfa__prompt'
HEADER = """; Kernarg layout for this problem (56 bytes, ptrs only, base s[0:1]):
"""

sW, sH, sJ, sBase, sT, sU = 3, 18, 19, 48, 49, 50
SK, SV, SQ, SO, SOUT, SWS, SDBG = 20, 24, 28, 32, 36, 40, 44
sPub = 51
sHb = 52
sCnt = 53
PSTRIDE = 8192 + 256

L_PHI, L_KVB, L_V = 0, 4096, 8192
LDS_BYTES = L_V + 65536

vN, vG, vL, vT0, vT1, vKA, vOA, vVA = 1, 2, 3, 4, 5, 6, 7, 8
vM0, vM1 = 9, 10
vTR0, vTR1 = 11, 12
vX = 13
TA, TB = 16, 20
vP, vGm, vD2 = 24, 28, 32
vPhi = 36
vOnes = 38
vRcp = 42
vZ = 46
OM, KR, QR = 48, 80, 112
GA = 144
KVB = 208

LF = 'nt'
LOG2E, CMUL, EPS = '0x3fb8aa3b', '0x3eb504f3', '0x358637bd'

def prologue(a, endlabel):
    a(f"""
s_cmp_ge_u32 s2, 256
s_cbranch_scc1 {endlabel}
s_load_dwordx8 s[4:11], s[0:1], 0
s_load_dwordx4 s[12:15], s[0:1], 32
s_load_dwordx2 s[16:17], s[0:1], 48
v_lshrrev_b32 v{vT0}, 6, v0
v_and_b32 v{vL}, 63, v0
v_and_b32 v{vN}, 15, v0
v_readfirstlane_b32 s{sW}, v{vT0}
v_bfe_u32 v{vG}, v0, 4, 2
s_and_b32 s{sH}, s2, 15
s_lshr_b32 s{sJ}, s2, 4
s_lshl_b32 s{sT}, s{sH}, 20
s_lshl_b32 s{sU}, s{sJ}, 16
s_or_b32 s{sBase}, s{sT}, s{sU}
s_mul_i32 s{sHb}, s{sH}, {16*PSTRIDE}
s_mul_i32 s{sT}, s{sJ}, {PSTRIDE}
s_add_u32 s{sPub}, s{sHb}, s{sT}
v_lshlrev_b32 v{vOA}, 9, v{vN}
v_lshl_add_u32 v{vOA}, v{vG}, 4, v{vOA}
v_lshl_add_u32 v{vKA}, v{vT0}, 13, v{vOA}
s_waitcnt lgkmcnt(0)
""")
    for srd, p in ((SQ, 4), (SK, 6), (SV, 8), (SOUT, 12)):
        a(f"""
s_add_u32 s{srd}, s{p}, s{sBase}
s_addc_u32 s{srd+1}, s{p+1}, 0
s_mov_b32 s{srd+2}, 65536
s_mov_b32 s{srd+3}, 0x20000
""")
    for srd, p, n in ((SO, 10, 4096), (SDBG, 14, 256), (SWS, 16, 256*PSTRIDE)):
        a(f"""
s_mov_b32 s{srd}, s{p}
s_mov_b32 s{srd+1}, s{p+1}
s_mov_b32 s{srd+2}, {n}
s_mov_b32 s{srd+3}, 0x20000
""")

def load_frags(a, base, addr, srd, flags=''):
    for t in range(8):
        a(f"buffer_load_dwordx4 {vr(base+4*t,4)}, v{addr}, {sr(srd,4)}, 0 offen offset:{64*t} {flags}")

def v_dma(a, flags=''):
    a(f"""
v_lshrrev_b32 v{vT0}, 5, v0          ; 2w + (l>>5)
v_and_b32 v{vT1}, 7, v{vT0}
v_lshlrev_b32 v{vT1}, 1, v{vT1}
v_and_b32 v{vVA}, 31, v0
v_xor_b32 v{vVA}, v{vVA}, v{vT1}
v_lshlrev_b32 v{vVA}, 4, v{vVA}
v_lshl_add_u32 v{vVA}, v{vT0}, 9, v{vVA}
s_lshl_b32 s{sT}, s{sW}, 10
s_add_u32 s{sT}, s{sT}, {L_V}
s_mov_b32 s{sU}, 0
""")
    for i in range(8):
        a(f"""
s_mov_b32 m0, s{sT}
s_add_u32 s{sT}, s{sT}, 8192
buffer_load_dwordx4 v{vVA}, {sr(SV,4)}, s{sU} offen {flags} lds
s_add_u32 s{sU}, s{sU}, 8192
""")

def consts(a):
    a(f"""
v_lshlrev_b32 v{vT0}, 2, v{vG}
v_sub_u32 v{vT0}, v{vN}, v{vT0}        ; d = n - 4g
v_mov_b32 v{vT1}, 0xffff
v_mov_b32 v{vX}, 0xffff0000
v_cmp_eq_u32 vcc, 0, v{vT0}
v_cndmask_b32 v{vM0}, 0, v{vT1}, vcc
v_cmp_eq_u32 vcc, 1, v{vT0}
v_cndmask_b32 v{vM0}, v{vM0}, v{vX}, vcc
v_cmp_eq_u32 vcc, 2, v{vT0}
v_cndmask_b32 v{vM1}, 0, v{vT1}, vcc
v_cmp_eq_u32 vcc, 3, v{vT0}
v_cndmask_b32 v{vM1}, v{vM1}, v{vX}, vcc
v_and_b32 v{TA}, 0x3e803e80, v{vM0}
v_and_b32 v{TA+1}, 0x3e803e80, v{vM1}
""")

def phi(a, R, isq, waits):
    for t in range(8):
        if waits[t] is not None:
            a(f"s_waitcnt vmcnt({waits[t]})")
        c1 = '0' if t == 0 else vr(vP, 4)
        c2 = '0' if t == 0 else vr(vGm, 4)
        if isq:
            a(f"v_mfma_f32_16x16x32_bf16 {vr(vP,4)}, {vr(OM+4*t,4)}, {vr(R+4*t,4)}, {c1}")
        else:
            a(f"v_mfma_f32_16x16x32_bf16 {vr(vP,4)}, {vr(R+4*t,4)}, {vr(OM+4*t,4)}, {c1}")
        a(f"v_mfma_f32_16x16x32_bf16 {vr(vGm,4)}, {vr(R+4*t,4)}, {vr(R+4*t,4)}, {c2}")
    gd, cc = (TB+2, TA+2) if isq else (TA+2, TB+2)
    a(f"""
v_mov_b32 v{cc}, 0xbd00bd00
v_mov_b32 v{cc+1}, 0xbd00bd00
v_cvt_pk_bf16_f32 v{TB}, v{vP}, v{vP+1}
v_cvt_pk_bf16_f32 v{TB+1}, v{vP+2}, v{vP+3}
v_cvt_pk_bf16_f32 v{gd}, v{vGm}, v{vGm+1}
v_cvt_pk_bf16_f32 v{gd+1}, v{vGm+2}, v{vGm+3}
v_and_b32 v{gd}, v{gd}, v{vM0}
v_and_b32 v{gd+1}, v{gd+1}, v{vM1}
v_mfma_f32_16x16x32_bf16 {vr(vD2,4)}, {vr(TA,4)}, {vr(TB,4)}, 0
""")
    for op in (lambda r: f"v_cvt_pk_bf16_f32 v{r}, 0, v{r}",
               lambda r: f"v_mul_f32 v{r}, {LOG2E}, v{r}",
               lambda r: f"v_exp_f32 v{r}, v{r}",
               lambda r: f"v_cvt_pk_bf16_f32 v{r}, 0, v{r}",
               lambda r: f"v_mul_f32 v{r}, {CMUL}, v{r}",
               lambda r: f"v_cvt_pk_bf16_f32 v{r}, 0, v{r}",
               lambda r: f"v_add_f32 v{r}, {EPS}, v{r}"):
        for r in range(4):
            a(op(vD2 + r))
    a(f"""
v_cvt_pk_bf16_f32 v{vPhi}, v{vD2}, v{vD2+1}
v_cvt_pk_bf16_f32 v{vPhi+1}, v{vD2+2}, v{vD2+3}
""")
    if isq:
        a(f"""
v_cmp_gt_u32 vcc, 32, v{vL}
v_cndmask_b32 v{vPhi}, 0, v{vPhi}, vcc
v_cndmask_b32 v{vPhi+1}, 0, v{vPhi+1}, vcc
""")

def phik_to_lds(a):
    a(f"""
s_lshr_b32 s{sT}, s{sW}, 1
s_lshl_b32 s{sT}, s{sT}, 10
s_and_b32 s{sU}, s{sW}, 1
s_lshl_b32 s{sU}, s{sU}, 3
s_add_u32 s{sT}, s{sT}, s{sU}
v_lshl_add_u32 v{vT0}, v{vL}, 4, s{sT}
ds_write_b64 v{vT0}, {vr(vPhi,2)} offset:{L_PHI}
""")

def v_phase(a, AF, BF, D0, D1, DZ):
    a(f"""
v_lshrrev_b32 v{vT0}, 2, v{vL}         ; rowl = l>>2  (= 4g + (n>>2))
v_and_b32 v{vT1}, 7, v{vT0}
s_lshl_b32 s{sT}, s{sW}, 1
v_xor_b32 v{vT1}, s{sT}, v{vT1}
v_lshlrev_b32 v{vT1}, 5, v{vT1}
v_lshl_add_u32 v{vTR0}, v{vT0}, 9, v{vT1}
v_and_b32 v{vT1}, 3, v{vL}
v_lshl_add_u32 v{vTR0}, v{vT1}, 3, v{vTR0}
v_add_u32 v{vTR0}, {L_V}, v{vTR0}
v_xor_b32 v{vTR1}, 32, v{vTR0}
v_lshlrev_b32 v{vT0}, 4, v{vL}
v_mov_b32 v{vOnes}, 0x3f803f80
v_mov_b32 v{vOnes+1}, 0x3f803f80
v_mov_b32 v{vOnes+2}, 0x3f803f80
v_mov_b32 v{vOnes+3}, 0x3f803f80
""")
    for s in range(4):
        a(f"ds_read_b128 {vr(AF+4*s,4)}, v{vT0} offset:{L_PHI+1024*s}")
    for s in range(4):
        for u in range(2):
            for hh in range(2):
                a(f"ds_read_b64_tr_b16 {vr(BF+8*s+4*u+2*hh,2)}, v{vTR0+u} offset:{(32*s+16*hh)*512}")
        if s == 1:
            a("s_waitcnt lgkmcnt(4)")
            v_mf(a, 0, AF, BF, D0, D1, DZ)
    a("s_waitcnt lgkmcnt(8)")
    v_mf(a, 1, AF, BF, D0, D1, DZ)
    a("s_waitcnt lgkmcnt(4)")
    v_mf(a, 2, AF, BF, D0, D1, DZ)
    a("s_waitcnt lgkmcnt(0)")
    v_mf(a, 3, AF, BF, D0, D1, DZ)

def v_mf(a, s, AF, BF, D0, D1, DZ):
    c = lambda D: '0' if s == 0 else vr(D, 4)
    a(f"""
v_mfma_f32_16x16x32_bf16 {vr(D0,4)}, {vr(AF+4*s,4)}, {vr(BF+8*s,4)}, {c(D0)}
v_mfma_f32_16x16x32_bf16 {vr(D1,4)}, {vr(AF+4*s,4)}, {vr(BF+8*s+4,4)}, {c(D1)}
v_mfma_f32_16x16x32_bf16 {vr(DZ,4)}, {vr(AF+4*s,4)}, {vr(vOnes,4)}, {c(DZ)}
""")

def publish(a, D0, D1, DZ, flags):
    for r in range(4):
        a(f"v_permlane32_swap_b32 v{D0+r}, v{D1+r}")
    a(f"""
v_lshlrev_b32 v{vT0}, 4, v0
buffer_store_dwordx4 {vr(D0,4)}, v{vT0}, {sr(SWS,4)}, s{sPub} offen {flags}
v_and_b32 v{vT1}, 0x1ef, v0
v_cmp_eq_u32 vcc, 0, v{vT1}
v_lshlrev_b32 v{vT1}, 4, v{vG}
v_add_u32 v{vT1}, 8192, v{vT1}
v_mov_b32 v{vX}, 0x7fffff00
v_cndmask_b32 v{vT1}, v{vX}, v{vT1}, vcc
buffer_store_dwordx4 {vr(DZ,4)}, v{vT1}, {sr(SWS,4)}, s{sPub} offen {flags}
""")

def gather(a, flags):
    a(f"""
v_lshlrev_b32 v{vT0}, 4, v0
s_mov_b32 s{sT}, s{sHb}
""")
    for p in range(16):
        a(f"buffer_load_dwordx4 {vr(GA+4*p,4)}, v{vT0}, {sr(SWS,4)}, s{sT} offen {flags}")
        if p < 15:
            a(f"s_add_u32 s{sT}, s{sT}, {PSTRIDE}")
    a(f"""
v_mul_u32_u24 v{vT1}, {PSTRIDE}, v{vN}
v_and_b32 v{vX}, 1, v{vG}
v_lshl_add_u32 v{vT1}, v{vX}, 4, v{vT1}
v_add_u32 v{vT1}, 8192, v{vT1}
buffer_load_dwordx4 {vr(vRcp,4)}, v{vT1}, {sr(SWS,4)}, s{sHb} offen {flags}
""")
    a(f"""
v_bfe_u32 v{vT0}, v{vN}, 1, 2          ; c>>1
v_lshlrev_b32 v{vT0}, 9, v{vT0}
v_lshl_add_u32 v{vT0}, v{vX}, 8, v{vT0} ; + g2*256
v_lshrrev_b32 v{vT1}, 5, v{vL}         ; upper
v_lshl_add_u32 v{vT0}, v{vT1}, 5, v{vT0}
v_lshrrev_b32 v{vT1}, 3, v{vN}
v_lshl_add_u32 v{vT0}, v{vT1}, 4, v{vT0}
v_and_b32 v{vT1}, 1, v{vN}
v_lshl_add_u32 v{vT0}, v{vT1}, 3, v{vT0}
s_lshr_b32 s{sT}, s{sW}, 2
s_lshl_b32 s{sT}, s{sT}, 11
s_and_b32 s{sU}, s{sW}, 3
s_lshl_b32 s{sU}, s{sU}, 6
s_add_u32 s{sT}, s{sT}, s{sU}
v_add_u32 v{vT0}, s{sT}, v{vT0}
""")
    for p in range(1, 16):
        a(f"s_waitcnt vmcnt({16-p})")
        a(f"v_pk_add_f32 {vr(GA,2)}, {vr(GA,2)}, {vr(GA+4*p,2)}")
        a(f"v_pk_add_f32 {vr(GA+2,2)}, {vr(GA+2,2)}, {vr(GA+4*p+2,2)}")
    a(f"""
v_cvt_pk_bf16_f32 v{GA+4}, v{GA}, v{GA+1}
v_cvt_pk_bf16_f32 v{GA+5}, v{GA+2}, v{GA+3}
ds_write_b64 v{vT0}, {vr(GA+4,2)} offset:{L_KVB}
s_waitcnt vmcnt(0)
""")
    for sh in (8, 4, 2, 1):
        for r in range(4):
            a(f"v_add_f32_dpp v{vRcp+r}, v{vRcp+r}, v{vRcp+r} row_ror:{sh} row_mask:0xf bank_mask:0xf")
    a(f"""
v_cvt_pk_bf16_f32 v{vZ}, v{vRcp}, v{vRcp+1}
v_cvt_pk_bf16_f32 v{vZ+1}, v{vRcp+2}, v{vRcp+3}
v_and_b32 v{vT0}, 31, v{vL}
v_lshlrev_b32 v{vT0}, 4, v{vT0}
s_waitcnt lgkmcnt(0)
s_barrier
""")
    for i in range(8):
        a(f"ds_read_b128 {vr(KVB+4*i,4)}, v{vT0} offset:{L_KVB+512*i}")

def out_phase(a, ACC, PK, flags=''):
    a(f"""
v_mfma_f32_16x16x16_bf16 {vr(vD2,4)}, {vr(vPhi,2)}, {vr(vZ,2)}, 0
v_lshrrev_b32 v{vT0}, 4, v0           ; 4w + g
v_lshlrev_b32 v{vT0}, 11, v{vT0}
v_lshl_add_u32 v{vT0}, v{vN}, 4, v{vT0}
""")
    for r in range(4):
        a(f"v_cvt_pk_bf16_f32 v{vRcp+r}, 0, v{vD2+r}")
    for r in range(4):
        a(f"v_add_f32 v{vRcp+r}, {EPS}, v{vRcp+r}")
    for r in range(4):
        a(f"v_cvt_pk_bf16_f32 v{vRcp+r}, 0, v{vRcp+r}")
    for r in range(4):
        a(f"v_rcp_f32 v{vRcp+r}, v{vRcp+r}")
    for hf in range(2):
        for c in range(8):
            i = hf*4 + (c >> 1)
            if c % 2 == 0:
                a(f"s_waitcnt lgkmcnt({7-i})")
            a(f"v_mfma_f32_16x16x16_bf16 {vr(ACC+32*hf+4*c,4)}, {vr(vPhi,2)}, {vr(KVB+4*i+2*(c&1),2)}, 0")
    for hf in range(2):
        for r in range(4):
            regs = [ACC+32*hf+4*c+r for c in range(8)]
            for x in regs:
                a(f"v_cvt_pk_bf16_f32 v{x}, 0, v{x}")
            for x in regs:
                a(f"v_mul_f32 v{x}, v{vRcp+r}, v{x}")
            pk = PK + 4*((hf*4+r) % 4)
            for c2 in range(4):
                a(f"v_cvt_pk_bf16_f32 v{pk+c2}, v{regs[2*c2]}, v{regs[2*c2+1]}")
            a(f"buffer_store_dwordx4 {vr(pk,4)}, v{vT0}, {sr(SOUT,4)}, 0 offen offset:{r*512+hf*256} {flags}")

def kernel_head(a, name):
    a(f""".globl {name}
.p2align 8
.type {name},@function
{name}:""")

def two_kernel():
    a = Asm()
    k1, k2 = 'rfa_kv_kernel', 'rfa_out_kernel'
    a('.amdgcn_target "amdgcn-amd-amdhsa--gfx950"\n.text')
    kernel_head(a, k1)
    prologue(a, 'L_end1')
    load_frags(a, OM, vOA, SO)
    load_frags(a, KR, vKA, SK, LF)
    v_dma(a, LF)
    consts(a)
    phi(a, KR, False, [15-t for t in range(8)])
    phik_to_lds(a)
    a("s_waitcnt vmcnt(0) lgkmcnt(0)\ns_barrier")
    v_phase(a, QR, KR, vP, vGm, vD2)
    publish(a, vP, vGm, vD2, '')
    a("L_end1:\ns_endpgm")
    kernel_head(a, k2)
    prologue(a, 'L_end2')
    load_frags(a, OM, vOA, SO)
    load_frags(a, QR, vKA, SQ, LF)
    consts(a)
    phi(a, QR, True, [7-t for t in range(8)])
    gather(a, '')
    out_phase(a, OM, GA)
    a("L_end2:\ns_endpgm")
    hdr = HEADER + f"; @launch kernel={k1} grid=(256,1,1) block=(512,1,1) lds={LDS_BYTES}\n; @launch kernel={k2} grid=(256,1,1) block=(512,1,1) lds={LDS_BYTES}\n"
    return hdr + a.text() + descriptor(k1, 240) + descriptor(k2, 240)

def fused():
    a = Asm()
    k = NAME + '_kernel'
    a('.amdgcn_target "amdgcn-amd-amdhsa--gfx950"\n.text')
    kernel_head(a, k)
    prologue(a, 'L_end')
    load_frags(a, OM, vOA, SO)
    load_frags(a, KR, vKA, SK, LF)
    v_dma(a, LF)
    load_frags(a, QR, vKA, SQ, LF)
    consts(a)
    phi(a, KR, False, [23-t for t in range(8)])
    phik_to_lds(a)
    a("s_waitcnt vmcnt(8) lgkmcnt(0)\ns_barrier")
    v_phase(a, GA, KR, vP, vGm, vD2)
    publish(a, vP, vGm, vD2, 'sc1')
    a("s_nop 1")
    phi(a, QR, True, [9-t for t in range(8)])
    a(f"""
s_waitcnt vmcnt(0)
s_barrier
s_cmp_lg_u32 s{sW}, 0
s_cbranch_scc1 L_synced
s_lshl_b32 s{sT}, s{sH}, 2
v_mov_b32 v{vT0}, 1
v_mov_b32 v{vT1}, 0
s_mov_b64 exec, 1
buffer_atomic_add v{vT0}, v{vT1}, {sr(SDBG,4)}, s{sT} offen
s_mov_b32 s{sCnt}, 0
L_poll:
buffer_load_dword v{vT0}, v{vT1}, {sr(SDBG,4)}, s{sT} offen sc1
s_add_u32 s{sCnt}, s{sCnt}, 1
s_waitcnt vmcnt(0)
v_readfirstlane_b32 s{sU}, v{vT0}
s_cmp_ge_u32 s{sCnt}, 0x100000
s_cbranch_scc1 L_polled
s_cmp_lt_u32 s{sU}, 16
s_cbranch_scc1 L_poll
L_polled:
s_mov_b64 exec, -1
L_synced:
s_barrier
""")
    gather(a, 'sc1')
    out_phase(a, OM, GA)
    a("L_end:\ns_endpgm")
    hdr = HEADER + f"; @launch grid=(256,1,1) block=(512,1,1) lds={LDS_BYTES}\n"
    return hdr + a.text() + descriptor(k, 240)

if __name__ == '__main__':
    open('two1.s', 'w').write(two_kernel())
    open('fused1.s', 'w').write(fused())
```

```python
import sys
from asmlib import *
import gen1
from gen1 import *

STAMP_OFF = 128 << 20
sST = 60
SST = 56

def stamp(a, i):
    a(f"s_memrealtime s[{sST+2*i}:{sST+2*i+1}]\ns_waitcnt lgkmcnt(0)")

def stamp_store(a, n):
    a(f"""
s_add_u32 s{SST}, s16, {STAMP_OFF}
s_addc_u32 s{SST+1}, s17, 0
s_mov_b32 s{SST+2}, {256*16*64}
s_mov_b32 s{SST+3}, 0x20000
s_lshl_b32 s{sT}, s2, 4
s_add_u32 s{sT}, s{sT}, s{sW}
s_lshl_b32 s{sT}, s{sT}, 6
v_and_b32 v{vT1}, 63, v0
v_lshlrev_b32 v{vT1}, 2, v{vT1}
v_mov_b32 v{vT0}, 0
""")
    for i in range(n):
        a(f"v_writelane_b32 v{vT0}, s{sST+2*i}, {i}")
    a(f"""s_getreg_b32 s{sU}, hwreg(HW_REG_XCC_ID)
v_writelane_b32 v{vT0}, s{sU}, 14
s_getreg_b32 s{sU}, hwreg(HW_REG_HW_ID)
v_writelane_b32 v{vT0}, s{sU}, 15
s_mov_b64 exec, 0xffff
buffer_store_dword v{vT0}, v{vT1}, {sr(SST,4)}, s{sT} offen
s_waitcnt vmcnt(0)
""")

def coal_loads(a, base, srd, flags):
    for t in range(8):
        off = 1024 * t
        a(f"buffer_load_dwordx4 {vr(base+4*t,4)}, v{vTR0 if t < 4 else vTR1}, {sr(srd,4)}, 0 offen offset:{off % 4096} {flags}")

def dma_loads(a, srd, ldsbase, flags):
    a(f"""s_lshl_b32 s{sT}, s{sW}, 13
s_add_u32 s{sT}, s{sT}, {ldsbase}""")
    for t in range(8):
        if t % 4 == 0:
            a(f"s_mov_b32 m0, s{sT}\ns_add_u32 s{sT}, s{sT}, 4096")
        a(f"buffer_load_dwordx4 v{vTR0 if t < 4 else vTR1}, {sr(srd,4)}, 0 offen offset:{(1024*t) % 4096} {flags} lds")

def stream(pat=('coal','coal','coal'), lflags='', sflags='', store=True, lds=73728, vg=128):
    a = Asm()
    k = NAME + '_kernel'
    a('.amdgcn_target "amdgcn-amd-amdhsa--gfx950"\n.text')
    kernel_head(a, k)
    a(f"s_memrealtime s[{sST}:{sST+1}]")
    prologue(a, 'L_end')
    a(f"""
v_lshrrev_b32 v{vT0}, 6, v0
v_lshlrev_b32 v{vTR0}, 4, v{vL}
v_lshl_add_u32 v{vTR0}, v{vT0}, 13, v{vTR0}
v_add_u32 v{vTR1}, 4096, v{vTR0}
""")
    nd = 0
    for p, base, srd in zip(pat, (16, 48, 80), (SK, SV, SQ)):
        if p == 'coal': coal_loads(a, base, srd, lflags)
        elif p == 'frag': load_frags(a, base, vKA, srd, lflags)
        elif p == 'dma':
            dma_loads(a, srd, nd * 65536, lflags); nd += 1
    n = 8 * len(pat)
    stamp(a, 1)
    a(f"s_waitcnt vmcnt({n-1})"); stamp(a, 2)
    for i in range(len(pat)):
        a(f"s_waitcnt vmcnt({n-8*(i+1)})"); stamp(a, 3+i)
    if store:
        for t in range(8):
            a(f"buffer_store_dwordx4 {vr(16+4*t,4)}, v{vTR0 if t < 4 else vTR1}, {sr(SOUT,4)}, 0 offen offset:{(1024*t) % 4096} {sflags}")
        stamp(a, 6)
        a("s_waitcnt vmcnt(0)"); stamp(a, 7)
    stamp_store(a, 8)
    a("L_end:\ns_endpgm")
    hdr = HEADER + f"; @launch grid=(256,1,1) block=(512,1,1) lds={lds}\n"
    return hdr + a.text() + descriptor(k, vg)

if __name__ == '__main__':
    V = {
     'st_nt_plain': dict(lflags='nt'),
     'st_nt_sc0': dict(lflags='nt', sflags='sc0'),
     'st_nt_sc1': dict(lflags='nt', sflags='sc1'),
     'st_nt_sc01': dict(lflags='nt', sflags='sc0 sc1'),
     'st_sc1nt_plain': dict(lflags='sc1 nt'),
     'st_sc0nt_plain': dict(lflags='sc0 nt'),
     'st_sc01nt_plain': dict(lflags='sc0 sc1 nt'),
     'st_frag_nt_plain': dict(pat=('frag','coal','frag'), lflags='nt'),
     'st_fdf_nt_plain': dict(pat=('frag','dma','frag'), lflags='nt'),
     'st_ddc_nt_plain': dict(pat=('dma','dma','coal'), lflags='nt', lds=131072),
    }
    for n, kw in V.items():
        open(n + '.s', 'w').write(stream(**kw))
    print(' '.join(n + '.s' for n in V))
```

```python
import sys
from asmlib import *
import gen1
from gen1 import *
from gen_stream import stamp, stamp_store, STAMP_OFF, sST

def amp_kernel(a, name, idx, K, use_max=True, nw=8):
    kernel_head(a, name)
    red = 'v_max_i32' if use_max else 'v_min_i32'
    a(f"""
s_cmp_ge_u32 s2, 1
s_cbranch_scc1 L_amp_end
s_load_dwordx2 s[16:17], s[0:1], 48
s_waitcnt lgkmcnt(0)
s_add_u32 s4, s16, {STAMP_OFF}
s_addc_u32 s5, s17, 0
s_mov_b32 s6, {256*16*64}
s_mov_b32 s7, 0x20000
s_load_dword s20, s[4:5], 0
v_and_b32 v1, 7, v0
v_lshrrev_b32 v2, 3, v0
v_lshlrev_b32 v1, 6, v1
v_lshl_add_u32 v1, v2, 10, v1
v_mov_b32 v4, 0x7fffffff
v_mov_b32 v5, {'0x80000000' if use_max else '0x7fffffff'}
s_mov_b32 s8, 0
s_waitcnt lgkmcnt(0)
L_amp_loop:
buffer_load_dword v6, v1, s[4:7], s8 offen
buffer_load_dword v7, v1, s[4:7], s8 offen offset:{4*idx}
s_add_u32 s8, s8, 8192
s_waitcnt vmcnt(0)
v_subrev_u32 v6, s20, v6
v_subrev_u32 v7, s20, v7
v_min_i32 v4, v4, v6
{red} v5, v5, v7
s_cmp_lt_u32 s8, {256*1024}
s_cbranch_scc1 L_amp_loop
s_mov_b32 s9, 0x7fffffff
s_mov_b32 s10, {'0x80000000' if use_max else '0x7fffffff'}
s_mov_b32 s11, 0
L_amp_red:
s_nop 4
v_readlane_b32 s12, v4, s11
v_readlane_b32 s13, v5, s11
s_nop 4
s_min_i32 s9, s9, s12
{'s_max_i32' if use_max else 's_min_i32'} s10, s10, s13
s_add_u32 s11, s11, 1
s_cmp_lt_u32 s11, 64
s_cbranch_scc1 L_amp_red
s_sub_u32 s10, s10, s9
s_min_u32 s10, s10, 8000
s_mul_i32 s10, s10, {K}
s_memrealtime s[12:13]
s_waitcnt lgkmcnt(0)
L_amp_spin:
s_memrealtime s[14:15]
s_waitcnt lgkmcnt(0)
s_sub_u32 s14, s14, s12
s_cmp_lt_u32 s14, s10
s_cbranch_scc1 L_amp_spin
L_amp_end:
s_endpgm
""")

def fused_stamped(a, k):
    kernel_head(a, k)
    a(f"s_memrealtime s[{sST}:{sST+1}]")
    prologue(a, 'L_end')
    load_frags(a, OM, vOA, SO)
    load_frags(a, KR, vKA, SK, gen1.LF)
    v_dma(a, gen1.LF)
    load_frags(a, QR, vKA, SQ, gen1.LF)
    stamp(a, 1)
    consts(a)
    phi(a, KR, False, [23-t for t in range(8)])
    phik_to_lds(a)
    stamp(a, 2)
    a("s_waitcnt vmcnt(8) lgkmcnt(0)\ns_barrier")
    stamp(a, 3)
    v_phase(a, GA, KR, vP, vGm, vD2)
    publish(a, vP, vGm, vD2, 'sc1')
    stamp(a, 4)
    phi(a, QR, True, [9-t for t in range(8)])
    a(f"""
s_waitcnt vmcnt(0)
s_barrier
""")
    stamp(a, 5)
    a(f"""
s_cmp_lg_u32 s{sW}, 0
s_cbranch_scc1 L_synced
s_lshl_b32 s{sT}, s{sH}, 2
v_mov_b32 v{vT0}, 1
v_mov_b32 v{vT1}, 0
s_mov_b64 exec, 1
buffer_atomic_add v{vT0}, v{vT1}, {sr(SDBG,4)}, s{sT} offen
s_mov_b32 s{sCnt}, 0
L_poll:
buffer_load_dword v{vT0}, v{vT1}, {sr(SDBG,4)}, s{sT} offen sc1
s_add_u32 s{sCnt}, s{sCnt}, 1
s_waitcnt vmcnt(0)
v_readfirstlane_b32 s{sU}, v{vT0}
s_cmp_ge_u32 s{sCnt}, 0x100000
s_cbranch_scc1 L_polled
s_cmp_lt_u32 s{sU}, 16
s_cbranch_scc1 L_poll
L_polled:
s_mov_b64 exec, -1
L_synced:
s_barrier
""")
    stamp(a, 6)
    gather(a, 'sc1')
    a("s_waitcnt lgkmcnt(0)")
    stamp(a, 7)
    out_phase(a, OM, GA)
    stamp(a, 8)
    a("s_waitcnt vmcnt(0)")
    stamp(a, 9)
    stamp_store(a, 10)
    a("L_end:\ns_endpgm")

def make(idx, K=20, use_max=True):
    a = Asm()
    a('.amdgcn_target "amdgcn-amd-amdhsa--gfx950"\n.text')
    k = 'main_kernel'
    fused_stamped(a, k)
    hdr = HEADER + f"; @launch kernel={k} grid=(256,1,1) block=(512,1,1) lds={LDS_BYTES}\n"
    desc = descriptor(k, 240)
    if idx is not None:
        amp_kernel(a, 'amp_kernel', idx, K, use_max)
        hdr += "; @launch kernel=amp_kernel grid=(1,1,1) block=(64,1,1) lds=0\n"
        desc += descriptor('amp_kernel', 16)
    return hdr + a.text() + desc

if __name__ == '__main__':
    open('amp_none.s', 'w').write(make(None))
    for i in range(10):
        open(f'amp_max{i}.s', 'w').write(make(i))
        open(f'amp_min{i}.s', 'w').write(make(i, use_max=False))
    open(f'amp_zero.s', 'w').write(make(9, K=0))
```

```python
import sys
from asmlib import *

NAME = 'standalone__linear_kernel_rfa__prompt'
HEADER = """; Kernarg layout for this problem (56 bytes, ptrs only, base s[0:1]):
"""
LOG2E, CMUL, EPS = '0x3fb8aa3b', '0x3eb504f3', '0x358637bd'
STAMP_OFF = 128 << 20

sW, sH, sJ = 3, 18, 19
SK, SV, SQ, SOUT, SOH, SWS, SOM = 20, 24, 28, 32, 36, 40, 44
sBase, sT, sU, sM0a, sM0b, sCnt, sMode, sXcc = 48, 49, 50, 51, 52, 53, 54, 55
sTag = 56
sTmp64 = 58
sStamp = 60
sStamp0 = 62
SST = 64
sVoff = 68
WS_HEAD = 8192
W_KV, W_R, W_R2, W_E = 0, 4096, 4096 + 256, 4096 + 512
L_KQ, L_V, L_OM, L_PHI, L_KVB, L_Z = 0, 65536, 131072, 135168, 139264, 143360
L_MODE = L_Z + 16
LDS_BYTES = L_Z + 64
vL, vN, vG, vT0, vT1, vT2, vS = 1, 2, 3, 4, 5, 6, 7
vA = 8
vF = 16
vVA, vM0, vM1, vTR0, vTR1, vPA = 20, 21, 22, 23, 24, 25
vPhi, vZ = 26, 28
vB = 30
TA, TB = 34, 38
vP, vGm, vD2, vRcp = 42, 46, 50, 54
vOA, vH2 = 58, 59
vG2 = 60
OM, FR, KVB, PK = 64, 96, 128, 160
NVGPR = 168
SPIN = 1 << 16

class VM:
    def __init__(self, a): self.a, self.q = a, []
    def issue(self, name): self.q.append(name)
    def wait(self, name):
        if name is None:
            n = 0; self.q = []
        else:
            if name not in self.q: return
            i = self.q.index(name); n = len(self.q) - i - 1; self.q = self.q[i+1:]
        self.a(f"s_waitcnt vmcnt({n})")

def gen(N=3, stamps=False, lf='nt', sf='nt', gf='sc1', force_slow=False, halfswap=True, vsplit=True, name=None, prio=True, early_h2=True):
    a = Asm()
    k = name or NAME + '_kernel'
    def stamp(i):
        if stamps:
            a(f"s_memrealtime s[{sStamp}:{sStamp+1}]\ns_waitcnt lgkmcnt(0)\nv_writelane_b32 v{vS}, s{sStamp}, {i}")
    def stamp_val(i, s):
        if stamps:
            a(f"v_writelane_b32 v{vS}, s{s}, {i}")
    a(f""".globl {k}
.p2align 8
.type {k},@function
{k}:""")
    if stamps:
        a(f"s_memrealtime s[{sStamp0}:{sStamp0+1}]\nv_mov_b32 v{vS}, 0")
    a(f"""
s_load_dwordx4 s[4:7], s[0:1], 0
s_cmp_ge_u32 s2, 256
s_cbranch_scc1 L_end
s_load_dwordx4 s[8:11], s[0:1], 16
s_load_dwordx2 s[12:13], s[0:1], 32
s_load_dwordx2 s[16:17], s[0:1], 48
v_lshrrev_b32 v{vT0}, 6, v0
v_and_b32 v{vL}, 63, v0
s_and_b32 s{sH}, s2, 15
v_readfirstlane_b32 s{sW}, v{vT0}
s_lshr_b32 s{sJ}, s2, 4
s_lshl_b32 s{sT}, s{sH}, 20
s_lshl_b32 s{sU}, s{sJ}, 16
s_or_b32 s{sBase}, s{sT}, s{sU}
v_bfe_u32 v{vT1}, v0, 5, 1
v_and_b32 v{vT2}, 31, v0
v_xor_b32 v{vT2}, v{vT2}, v{vT1}
v_lshlrev_b32 v{vT2}, 4, v{vT2}
v_lshl_add_u32 v{vT2}, v{vT1}, 9, v{vT2}
s_mov_b32 s{SK+2}, 65536
s_mov_b32 s{SK+3}, 0x20000
s_cmp_eq_u32 s{sW}, 8
s_cbranch_scc1 L_helper
s_lshl_b32 s{sM0a}, s{sW}, 13
""")
    if halfswap:
        a(f"""s_and_b32 s{sT}, s{sW}, 1
s_mul_i32 s{sU}, s{sT}, 4096
s_add_u32 s{sM0a}, s{sM0a}, s{sU}
s_lshl_b32 s{sT}, s{sT}, 7
s_add_u32 s{sT}, s{sT}, s{sM0a}
v_xor_b32 v{vA}, s{sT}, v{vT2}""")
    else:
        a(f"v_xor_b32 v{vA}, s{sM0a}, v{vT2}")
    a(f"s_xor_b32 s{sM0b}, s{sM0a}, 4096")
    if L_KQ:
        raise NotImplementedError
    a(f"s_mov_b32 m0, s{sM0a}")
    for t in range(1, 8):
        a(f"v_xor_b32 v{vA+t}, {t*32 + (t>>2)*4096}, v{vA}")
    a(f"""s_waitcnt lgkmcnt(0)
s_add_u32 s{SK}, s6, s{sBase}
s_addc_u32 s{SK+1}, s7, 0""")
    if stamps:
        a(f"v_writelane_b32 v{vS}, s{sStamp0}, 0")
    vm = VM(a)
    seq = [('K', t) for t in range(8)] + [('V', t) for t in range(8)] + [('Q', t) for t in range(8)]
    state = {'next': 0, 'm0': ('KQ', 0)}
    def issue_one():
        kind, t = seq[state['next']]
        if kind == 'V':
            if t == 0:
                a(f"s_lshl_b32 s{sT}, s{sW}, 10\ns_add_u32 m0, s{sT}, {L_V}\ns_mov_b32 s{sVoff}, 0")
            else:
                a(f"s_add_u32 m0, m0, 8192\ns_add_u32 s{sVoff}, s{sVoff}, 8192")
            state['m0'] = None
            a(f"buffer_load_dwordx4 v{vVA}, {sr(SV,4)}, s{sVoff} offen {lf} lds")
        else:
            want = ('KQ', t >> 2)
            if state['m0'] != want:
                a(f"s_mov_b32 m0, s{sM0b if t >> 2 else sM0a}")
                state['m0'] = want
            a(f"buffer_load_dwordx4 v{vA+t}, {sr(SK if kind == 'K' else SQ,4)}, 0 offen offset:{(t&3)*1024} {lf} lds")
        vm.issue(seq[state['next']])
        state['next'] += 1
    def pace_until_done(item):
        idx = seq.index(item)
        while state['next'] < len(seq) and state['next'] - N <= idx:
            if state['next'] >= N:
                vm.wait(seq[state['next'] - N])
            issue_one()
        vm.wait(item)
    for _ in range(N):
        issue_one()
    for srd, p in ((SV, 8), (SQ, 4), (SOUT, 12)):
        a(f"""s_add_u32 s{srd}, s{p}, s{sBase}
s_addc_u32 s{srd+1}, s{p+1}, 0
s_mov_b32 s{srd+2}, 65536
s_mov_b32 s{srd+3}, 0x20000""")
    a(f"""s_mul_i32 s{sT}, s{sH}, {WS_HEAD}
s_add_u32 s{SWS}, s16, s{sT}
s_addc_u32 s{SWS+1}, s17, 0
s_mov_b32 s{SWS+2}, {WS_HEAD}
s_mov_b32 s{SWS+3}, 0x20000
v_and_b32 v{vN}, 15, v0
v_bfe_u32 v{vG}, v0, 4, 2
v_lshrrev_b32 v{vT0}, 5, v0
v_and_b32 v{vT1}, 7, v{vT0}
v_lshlrev_b32 v{vT1}, 1, v{vT1}
v_and_b32 v{vVA}, 31, v0
v_xor_b32 v{vVA}, v{vVA}, v{vT1}
v_lshlrev_b32 v{vVA}, 4, v{vVA}
v_lshl_add_u32 v{vVA}, v{vT0}, 9, v{vVA}
v_xor_b32 v{vT0}, v{vG}, v{vN}
v_lshlrev_b32 v{vT0}, 4, v{vT0}
v_lshl_add_u32 v{vT0}, v{vN}, 9, v{vT0}
s_lshl_b32 s{sT}, s{sW}, 13
v_add_u32 v{vF}, s{sT}, v{vT0}
v_xor_b32 v{vF+1}, 64, v{vF}
v_xor_b32 v{vF+2}, 0x80, v{vF}
v_xor_b32 v{vF+3}, 0xc0, v{vF}
v_and_b32 v{vT1}, 7, v{vN}
v_xor_b32 v{vT0}, v{vG}, v{vT1}
v_lshlrev_b32 v{vT0}, 4, v{vT0}
v_lshl_add_u32 v{vT0}, v{vT1}, 9, v{vT0}
v_add_u32 v{vB}, {L_OM}, v{vT0}
v_xor_b32 v{vB+1}, 64, v{vB}
v_xor_b32 v{vB+2}, 0x80, v{vB}
v_xor_b32 v{vB+3}, 0xc0, v{vB}
v_lshlrev_b32 v{vT0}, 2, v{vG}
v_sub_u32 v{vT0}, v{vN}, v{vT0}
v_mov_b32 v{vT1}, 0xffff
v_mov_b32 v{vT2}, 0xffff0000
v_cmp_eq_u32 vcc, 0, v{vT0}
v_cmp_eq_u32 s[{sTmp64}:{sTmp64+1}], 1, v{vT0}
v_cndmask_b32 v{vM0}, 0, v{vT1}, vcc
v_cmp_eq_u32 vcc, 2, v{vT0}
v_cndmask_b32 v{vM0}, v{vM0}, v{vT2}, s[{sTmp64}:{sTmp64+1}]
v_cmp_eq_u32 s[{sTmp64}:{sTmp64+1}], 3, v{vT0}
v_cndmask_b32 v{vM1}, 0, v{vT1}, vcc
v_and_b32 v{TA}, 0x3e803e80, v{vM0}
v_cndmask_b32 v{vM1}, v{vM1}, v{vT2}, s[{sTmp64}:{sTmp64+1}]
v_and_b32 v{TA+1}, 0x3e803e80, v{vM1}
v_lshrrev_b32 v{vT0}, 2, v{vL}
v_and_b32 v{vT1}, 7, v{vT0}
s_lshl_b32 s{sT}, s{sW}, 1
v_xor_b32 v{vT1}, s{sT}, v{vT1}
v_lshlrev_b32 v{vT1}, 5, v{vT1}
v_lshl_add_u32 v{vTR0}, v{vT0}, 9, v{vT1}
v_and_b32 v{vT1}, 3, v{vL}
v_lshl_add_u32 v{vTR0}, v{vT1}, 3, v{vTR0}
v_add_u32 v{vTR0}, {L_V}, v{vTR0}
v_xor_b32 v{vTR1}, 32, v{vTR0}
v_lshlrev_b32 v{vPA}, 4, v{vL}
v_add_u32 v{vPA}, {L_PHI}, v{vPA}
v_lshrrev_b32 v{vT0}, 4, v0
v_lshlrev_b32 v{vT0}, 11, v{vT0}
v_lshl_add_u32 v{vOA}, v{vN}, 4, v{vT0}
v_lshlrev_b32 v{vH2}, 3, v0
""")
    stamp(1)
    pace_until_done(('K', 7))
    stamp(2)
    a("s_barrier")
    def read_frags(dst, addr):
        for u in range(8):
            a(f"ds_read_b128 {vr(dst+4*u,4)}, v{addr+(u&3)} offset:{256*(u>>2)}")
    def phi(isq, pre_om):
        if pre_om:
            for u in range(8):
                a(f"ds_read_b128 {vr(OM+4*u,4)}, v{vB+(u&3)} offset:{256*(u>>2)}")
                a(f"ds_read_b128 {vr(FR+4*u,4)}, v{vF+(u&3)} offset:{256*(u>>2)}")
            waits = [min(15, 14 - 2*u) for u in range(8)]
        else:
            read_frags(FR, vF)
            waits = [7 - u for u in range(8)]
        gd, cc = (TB+2, TA+2) if isq else (TA+2, TB+2)
        a(f"v_mov_b32 v{cc}, 0xbd00bd00\nv_mov_b32 v{cc+1}, 0xbd00bd00")
        for u in range(8):
            a(f"s_waitcnt lgkmcnt({waits[u]})")
            c1 = '0' if u == 0 else vr(vP, 4)
            c2 = '0' if u == 0 else vr(vGm, 4)
            a(f"v_mfma_f32_16x16x32_bf16 {vr(vGm,4)}, {vr(FR+4*u,4)}, {vr(FR+4*u,4)}, {c2}")
            if isq:
                a(f"v_mfma_f32_16x16x32_bf16 {vr(vP,4)}, {vr(OM+4*u,4)}, {vr(FR+4*u,4)}, {c1}")
            else:
                a(f"v_mfma_f32_16x16x32_bf16 {vr(vP,4)}, {vr(FR+4*u,4)}, {vr(OM+4*u,4)}, {c1}")
        a(f"""
v_cvt_pk_bf16_f32 v{gd}, v{vGm}, v{vGm+1}
v_cvt_pk_bf16_f32 v{gd+1}, v{vGm+2}, v{vGm+3}
v_and_b32 v{gd}, v{gd}, v{vM0}
v_and_b32 v{gd+1}, v{gd+1}, v{vM1}
v_cvt_pk_bf16_f32 v{TB}, v{vP}, v{vP+1}
v_cvt_pk_bf16_f32 v{TB+1}, v{vP+2}, v{vP+3}
v_mfma_f32_16x16x32_bf16 {vr(vD2,4)}, {vr(TA,4)}, {vr(TB,4)}, 0
""")
        for op in (lambda r: f"v_cvt_pk_bf16_f32 v{r}, 0, v{r}",
                   lambda r: f"v_mul_f32 v{r}, {LOG2E}, v{r}",
                   lambda r: f"v_exp_f32 v{r}, v{r}",
                   lambda r: f"v_cvt_pk_bf16_f32 v{r}, 0, v{r}",
                   lambda r: f"v_mul_f32 v{r}, {CMUL}, v{r}",
                   lambda r: f"v_cvt_pk_bf16_f32 v{r}, 0, v{r}",
                   lambda r: f"v_add_f32 v{r}, {EPS}, v{r}"):
            for r in range(4):
                a(op(vD2 + r))
        a(f"""
v_cvt_pk_bf16_f32 v{vPhi}, v{vD2}, v{vD2+1}
v_cvt_pk_bf16_f32 v{vPhi+1}, v{vD2+2}, v{vD2+3}
""")
    phi(False, True)
    a(f"""
s_lshr_b32 s{sT}, s{sW}, 1
s_lshl_b32 s{sT}, s{sT}, 10
s_and_b32 s{sU}, s{sW}, 1
s_lshl_b32 s{sU}, s{sU}, 3
s_add_u32 s{sT}, s{sT}, s{sU}
v_add_u32 v{vT0}, s{sT}, v{vPA}
ds_write_b64 v{vT0}, {vr(vPhi,2)}
v_and_b32 v{vT0}, 1, v{vG}
v_lshlrev_b32 v{vT0}, 11, v{vT0}
v_lshl_add_u32 v{vT0}, v{vN}, 6, v{vT0}
v_lshrrev_b32 v{vT1}, 2, v{vN}
v_lshl_add_u32 v{vT0}, v{vT1}, 4, v{vT0}
v_add_u32 v{vB}, {L_KVB}, v{vT0}
v_xor_b32 v{vB+1}, 16, v{vB}
v_xor_b32 v{vB+2}, 32, v{vB}
v_xor_b32 v{vB+3}, 48, v{vB}
""")
    stamp(3)
    AF, BF, D0, D1 = KVB, FR, vP, vGm
    def v_reads(s):
        for u in range(2):
            for hh in range(2):
                a(f"ds_read_b64_tr_b16 {vr(BF+8*s+4*u+2*hh,2)}, v{vTR0+u} offset:{(32*s+16*hh)*512}")
    def v_mf(s):
        c = lambda D: '0' if s == 0 else vr(D, 4)
        a(f"""v_mfma_f32_16x16x32_bf16 {vr(D0,4)}, {vr(AF+4*s,4)}, {vr(BF+8*s,4)}, {c(D0)}
v_mfma_f32_16x16x32_bf16 {vr(D1,4)}, {vr(AF+4*s,4)}, {vr(BF+8*s+4,4)}, {c(D1)}""")
    pace_until_done(('V', 5))
    a("s_waitcnt lgkmcnt(0)\ns_barrier")
    stamp(4)
    for s in range(4):
        a(f"ds_read_b128 {vr(AF+4*s,4)}, v{vPA} offset:{1024*s}")
    v_reads(0); v_reads(1)
    a("s_waitcnt lgkmcnt(4)"); v_mf(0)
    v_reads(2)
    a("s_waitcnt lgkmcnt(4)"); v_mf(1)
    a("s_waitcnt lgkmcnt(0)"); v_mf(2)
    a(f"v_mov_b32 v{vT1}, {L_MODE}")
    pace_until_done(('V', 7))
    stamp(5)
    a("s_barrier")
    v_reads(3)
    a(f"""ds_read_b32 v{vT1}, v{vT1}
v_lshlrev_b32 v{vT0}, 4, v0
v_cmp_gt_u32 vcc, 32, v{vL}
s_waitcnt lgkmcnt(1)""")
    v_mf(3)
    a(f"s_waitcnt lgkmcnt(0)\nv_readfirstlane_b32 s{sMode}, v{vT1}")
    for r in range(4):
        a(f"v_cndmask_b32 v{vD2+r}, v{D1+r}, v{D0+r}, vcc")
    for r in range(4):
        a(f"v_min_u32 v{vD2+r}, -2, v{vD2+r}")
    a(f"""s_cmp_eq_u32 s{sMode}, 0
s_cbranch_scc1 L_pub_slow
buffer_store_dwordx4 {vr(vD2,4)}, v{vT0}, {sr(SOUT,4)}, 0 offen
s_branch L_pub_done
L_pub_slow:
buffer_store_dwordx4 {vr(vD2,4)}, v{vT0}, {sr(SOUT,4)}, 0 offen sc1
L_pub_done:""")
    vm.issue('P')
    stamp(6)
    pace_until_done(('Q', 7))
    vm.wait(None)
    stamp(7)
    if early_h2:
        a(f"buffer_load_dwordx2 {vr(vG2,2)}, v{vH2}, {sr(SWS,4)}, 0 offen offset:{W_KV} {gf}")
    phi(True, False)
    a(f"""v_cmp_gt_u32 vcc, 32, v{vL}
s_mov_b32 s{sCnt}, 0
v_cndmask_b32 v{vPhi}, 0, v{vPhi}, vcc
v_cndmask_b32 v{vPhi+1}, 0, v{vPhi+1}, vcc
v_add_u32 v{vT0}, {L_KVB}, v{vH2}
v_and_b32 v{vT1}, 1, v{vG}
v_lshlrev_b32 v{vT1}, 3, v{vT1}
v_add_u32 v{vT1}, {L_Z}, v{vT1}""")
    stamp(8)
    if early_h2:
        a("s_branch L_h2_check")
    a(f"""L_h2:
buffer_load_dwordx2 {vr(vG2,2)}, v{vH2}, {sr(SWS,4)}, 0 offen offset:{W_KV} {gf}
L_h2_check:
s_add_u32 s{sCnt}, s{sCnt}, 1
s_waitcnt vmcnt(0)
v_max_u32 v{vT2}, v{vG2}, v{vG2+1}
v_cmp_eq_u32 vcc, -1, v{vT2}
s_cmp_ge_u32 s{sCnt}, {SPIN}
s_cbranch_scc1 L_h2_done
s_cbranch_vccnz L_h2
L_h2_done:
ds_write_b64 v{vT0}, {vr(vG2,2)}
s_waitcnt lgkmcnt(0)""")
    stamp(9)
    stamp_val(14, sCnt)
    a("s_barrier")
    stamp(10)
    a(f"ds_read_b64 {vr(vZ,2)}, v{vT1}")
    for i in range(8):
        a(f"ds_read_b128 {vr(KVB+4*i,4)}, v{vB+(i&3)} offset:{1024*(i>>2)}")
    ACC = OM
    a(f"s_waitcnt lgkmcnt(8)\nv_mfma_f32_16x16x16_bf16 {vr(vD2,4)}, {vr(vPhi,2)}, {vr(vZ,2)}, 0")
    def out_mf(hf, cs):
        for c in cs:
            i = hf*4 + (c >> 1)
            if c % 2 == 0:
                a(f"s_waitcnt lgkmcnt({7-i})")
            a(f"v_mfma_f32_16x16x16_bf16 {vr(ACC+32*hf+4*c,4)}, {vr(vPhi,2)}, {vr(KVB+4*i+2*(c&1),2)}, 0")
    out_mf(0, range(0, 4))
    for r in range(4):
        a(f"v_cvt_pk_bf16_f32 v{vRcp+r}, 0, v{vD2+r}")
    out_mf(0, range(4, 6))
    for r in range(4):
        a(f"v_add_f32 v{vRcp+r}, {EPS}, v{vRcp+r}")
    out_mf(0, range(6, 8))
    for r in range(4):
        a(f"v_cvt_pk_bf16_f32 v{vRcp+r}, 0, v{vRcp+r}")
    for r in range(4):
        a(f"v_rcp_f32 v{vRcp+r}, v{vRcp+r}")
    cnt = 0
    for hf in range(2):
        for r in range(4):
            regs = [ACC+32*hf+4*c+r for c in range(8)]
            if hf == 0:
                out_mf(1, range(2*r, 2*r+2))
            for x in regs:
                a(f"v_cvt_pk_bf16_f32 v{x}, 0, v{x}")
            for x in regs:
                a(f"v_mul_f32 v{x}, v{vRcp+r}, v{x}")
            pk = PK + 4*(cnt % 2); cnt += 1
            for c2 in range(4):
                a(f"v_cvt_pk_bf16_f32 v{pk+c2}, v{regs[2*c2]}, v{regs[2*c2+1]}")
            a(f"buffer_store_dwordx4 {vr(pk,4)}, v{vOA}, {sr(SOUT,4)}, 0 offen offset:{r*512+hf*256} {sf}")
            if cnt == 1:
                stamp(11)
    stamp(12)
    if stamps:
        a("s_waitcnt vmcnt(0)")
        stamp(13)
        a("s_branch L_fin")
    else:
        a("s_endpgm")
    hA, hC, hZ, hR, hK = 8, 12, 13, 14, 15
    hONE, hAF, hD, hG = 16, 20, 36, 64
    hX = 40
    a("L_helper:")
    if prio:
        a("s_setprio 3")
    a(f"""
v_mov_b32 v{hA}, v{vT2}
v_xor_b32 v{hA+1}, 32, v{vT2}
v_xor_b32 v{hA+2}, 64, v{vT2}
v_xor_b32 v{hA+3}, 0x60, v{vT2}
s_mov_b32 m0, {L_OM}
s_mov_b32 s{SOM+2}, 4096
s_mov_b32 s{SOM+3}, 0x20000
s_mul_i32 s{sT}, s{sH}, {WS_HEAD}
s_waitcnt lgkmcnt(0)
s_mov_b32 s{SOM}, s10
s_mov_b32 s{SOM+1}, s11
s_add_u32 s{SWS}, s16, s{sT}
s_addc_u32 s{SWS+1}, s17, 0
""")
    if stamps:
        a(f"v_writelane_b32 v{vS}, s{sStamp0}, 0")
    for t in range(4):
        a(f"buffer_load_dwordx4 v{hA+t}, {sr(SOM,4)}, 0 offen offset:{t*1024} lds")
    a(f"""
s_load_dwordx2 s[{sTag}:{sTag+1}], s[{SWS}:{SWS+1}], {W_E}
s_mov_b32 s{SWS+2}, {WS_HEAD}
s_mov_b32 s{SWS+3}, 0x20000
s_add_u32 s{SOUT}, s12, s{sBase}
s_addc_u32 s{SOUT+1}, s13, 0
s_mov_b32 s{SOUT+2}, 65536
s_mov_b32 s{SOUT+3}, 0x20000
s_lshl_b32 s{sT}, s{sH}, 20
s_add_u32 s{SOH}, s12, s{sT}
s_addc_u32 s{SOH+1}, s13, 0
s_mov_b32 s{SOH+2}, 0x100000
s_mov_b32 s{SOH+3}, 0x20000
s_getreg_b32 s{sXcc}, hwreg(HW_REG_XCC_ID, 0, 4)
v_and_b32 v{vN}, 15, v0
v_bfe_u32 v{vG}, v0, 4, 2
v_mov_b32 v{hONE}, -1
v_mov_b32 v{hONE+1}, -1
v_mov_b32 v{hONE+2}, -1
v_mov_b32 v{hONE+3}, -1
v_lshlrev_b32 v{hC}, 4, v{vL}
v_add_u32 v{hX}, 4096, v{hC}
v_and_b32 v{vT0}, 0x2f, v{vL}
v_cmp_eq_u32 vcc, 0, v{vT0}
v_lshlrev_b32 v{vT0}, 4, v{vG}
v_add_u32 v{vT0}, 8192, v{vT0}
v_mov_b32 v{vT1}, 0x7fffff00
v_cndmask_b32 v{hZ}, v{vT1}, v{vT0}, vcc
v_lshrrev_b32 v{vT0}, 3, v{vN}
s_lshl_b32 s{sT}, s{sJ}, 1
v_add_u32 v{vT0}, s{sT}, v{vT0}
v_bfe_u32 v{vT2}, v{vT0}, 2, 2
v_lshlrev_b32 v{hK}, 6, v{vT0}
v_bfe_u32 v{vT0}, v{vN}, 1, 2
v_xor_b32 v{vT0}, v{vT0}, v{vT2}
v_lshl_add_u32 v{hK}, v{vT0}, 4, v{hK}
v_and_b32 v{vT0}, 1, v{vN}
v_lshl_add_u32 v{hK}, v{vT0}, 3, v{hK}
v_lshl_add_u32 v{hK}, v{vG}, 11, v{hK}
v_cmp_gt_u32 vcc, 32, v{vL}
v_lshlrev_b32 v{hR}, 4, v{vN}
s_nop 0
v_cndmask_b32 v{hK}, v{vT1}, v{hK}, vcc
""")
    def clear(fl):
        for t in range(8):
            a(f"buffer_store_dwordx4 {vr(hONE,4)}, v{hC if t < 4 else hX}, {sr(SOUT,4)}, 0 offen offset:{(t&3)*1024} {fl}")
        a(f"buffer_store_dwordx4 {vr(hONE,4)}, v{hZ}, {sr(SOUT,4)}, 0 offen {fl}")
        a(f"buffer_store_dwordx2 {vr(hONE,2)}, v{hK}, {sr(SWS,4)}, 0 offen offset:{W_KV} {fl}")
    def ready(off):
        a(f"""s_lshl_b32 s{sT}, s{sJ}, 4
s_add_u32 s{sT}, s{sT}, {off}
v_mov_b32 v{vT0}, 0
s_waitcnt vmcnt(0)
s_mov_b64 exec, 1
buffer_store_dwordx4 {vr(hX+4,4)}, v{vT0}, {sr(SWS,4)}, s{sT} offen sc1
s_mov_b64 exec, -1""")
    def wait_ready(off, lab):
        a(f"""s_mov_b32 s{sCnt}, 0
s_mov_b32 s{sT}, {off}
{lab}:
buffer_load_dwordx4 {vr(hG,4)}, v{hR}, {sr(SWS,4)}, s{sT} offen sc1
s_add_u32 s{sCnt}, s{sCnt}, 1
s_waitcnt vmcnt(0)
v_cmp_ne_u64 vcc, s[{sTag}:{sTag+1}], {vr(hG,2)}
s_cmp_ge_u32 s{sCnt}, {SPIN}
s_cbranch_scc1 {lab}_done
s_cbranch_vccnz {lab}
{lab}_done:""")
    clear('')
    a(f"""s_waitcnt lgkmcnt(0)
s_add_u32 s{sTag}, s{sTag}, 1
s_addc_u32 s{sTag+1}, s{sTag+1}, 0
v_mov_b32 v{hX+4}, s{sTag}
v_mov_b32 v{hX+5}, s{sTag+1}
v_mov_b32 v{hX+6}, s{sXcc}
v_mov_b32 v{hX+7}, 0""")
    ready(W_R)
    stamp(1)
    a("s_barrier                     ; B1")
    stamp(2)
    wait_ready(W_R, 'L_rdy1')
    stamp(3)
    stamp_val(13, sCnt)
    a(f"""v_cmp_ne_u32 vcc, s{sXcc}, v{hG+2}
s_mov_b32 s{sMode}, 1""")
    if not force_slow:
        a("s_cbranch_vccz L_mode_done")
    a(f"s_mov_b32 s{sMode}, 0")
    clear('sc1')
    ready(W_R2)
    wait_ready(W_R2, 'L_rdy2')
    a(f"""L_mode_done:
v_mov_b32 v{vT0}, {L_MODE}
v_mov_b32 v{vT1}, s{sMode}
ds_write_b32 v{vT0}, v{vT1}
v_lshlrev_b32 v{vT0}, 4, v{vL}
v_add_u32 v{vT0}, {L_PHI}, v{vT0}
v_mov_b32 v{hONE}, 0x3f803f80
v_mov_b32 v{hONE+1}, 0x3f803f80
v_mov_b32 v{hONE+2}, 0x3f803f80
v_mov_b32 v{hONE+3}, 0x3f803f80
s_waitcnt lgkmcnt(0)
s_barrier                     ; B2a""")
    stamp(4)
    for s in range(4):
        a(f"ds_read_b128 {vr(hAF+4*s,4)}, v{vT0} offset:{1024*s}")
    a(f"""v_lshrrev_b32 v{vT1}, 5, v{vL}
v_lshlrev_b32 v{hA}, 16, v{vT1}
v_and_b32 v{vT1}, 31, v{vL}
v_lshl_add_u32 v{hA}, v{vT1}, 4, v{hA}
s_lshl_b32 s{sT}, s{sJ}, 9
v_add_u32 v{hA}, s{sT}, v{hA}
v_and_b32 v{vT1}, 1, v{vG}
v_lshlrev_b32 v{hA+2}, 3, v{vT1}
v_add_u32 v{hA+2}, {L_Z}, v{hA+2}
v_lshlrev_b32 v{vT1}, 4, v{vT1}
v_lshl_add_u32 v{hA+1}, v{vN}, 16, v{vT1}
v_add_u32 v{hA+1}, 8192, v{hA+1}""")
    for s in range(4):
        a(f"s_waitcnt lgkmcnt({3-s})\nv_mfma_f32_16x16x32_bf16 {vr(hD,4)}, {vr(hAF+4*s,4)}, {vr(hONE,4)}, {'0' if s == 0 else vr(hD,4)}")
    for r in range(4):
        a(f"v_min_u32 v{hD+r}, -2, v{hD+r}")
    a(f"""s_cmp_eq_u32 s{sMode}, 0
s_cbranch_scc1 L_z_slow
buffer_store_dwordx4 {vr(hD,4)}, v{hZ}, {sr(SOUT,4)}, 0 offen
s_branch L_z_done
L_z_slow:
buffer_store_dwordx4 {vr(hD,4)}, v{hZ}, {sr(SOUT,4)}, 0 offen sc1
L_z_done:
s_barrier                     ; B2b""")
    stamp(5)
    a(f"""s_mov_b32 s{sCnt}, 0
L_zg:
buffer_load_dwordx4 {vr(hX,4)}, v{hA+1}, {sr(SOH,4)}, 0 offen {gf}
s_add_u32 s{sCnt}, s{sCnt}, 1
s_waitcnt vmcnt(0)
v_max3_u32 v{vT0}, v{hX}, v{hX+1}, v{hX+2}
v_max_u32 v{vT0}, v{vT0}, v{hX+3}
v_cmp_eq_u32 vcc, -1, v{vT0}
s_cmp_ge_u32 s{sCnt}, {SPIN}
s_cbranch_scc1 L_zg_done
s_cbranch_vccnz L_zg
L_zg_done:""")
    stamp(6)
    stamp_val(14, sCnt)
    a(f"s_mov_b32 s{sCnt}, 0\nL_h1:\ns_mov_b32 s{sT}, 0")
    for i in range(8):
        a(f"buffer_load_dwordx4 {vr(hG+4*i,4)}, v{hA}, {sr(SOH,4)}, s{sT} offen {gf}")
        if i < 7:
            a(f"s_add_u32 s{sT}, s{sT}, 0x20000")
    a(f"s_add_u32 s{sCnt}, s{sCnt}, 1")
    for i in range(8):
        a(f"s_waitcnt vmcnt({7-i})")
        b = hG + 4*i
        if i == 0:
            a(f"v_max3_u32 v{vT0}, v{b}, v{b+1}, v{b+2}\nv_max_u32 v{vT0}, v{vT0}, v{b+3}")
        else:
            a(f"v_max3_u32 v{vT0}, v{vT0}, v{b}, v{b+1}\nv_max3_u32 v{vT0}, v{vT0}, v{b+2}, v{b+3}")
            a(f"v_pk_add_f32 {vr(hG,2)}, {vr(hG,2)}, {vr(b,2)}\nv_pk_add_f32 {vr(hG+2,2)}, {vr(hG+2,2)}, {vr(b+2,2)}")
    a(f"""v_cmp_eq_u32 vcc, -1, v{vT0}
s_cmp_ge_u32 s{sCnt}, {SPIN}
s_cbranch_scc1 L_h1_done
s_cbranch_vccnz L_h1
L_h1_done:""")
    for r in range(4):
        a(f"v_mov_b32 v{hG+4+r}, v{hG+r}")
    for r in range(4):
        a(f"v_permlane32_swap_b32 v{hG+r}, v{hG+4+r}")
    a(f"""v_pk_add_f32 {vr(hG,2)}, {vr(hG,2)}, {vr(hG+4,2)}
v_pk_add_f32 {vr(hG+2,2)}, {vr(hG+2,2)}, {vr(hG+6,2)}
v_cvt_pk_bf16_f32 v{hG+8}, v{hG}, v{hG+1}
v_cvt_pk_bf16_f32 v{hG+9}, v{hG+2}, v{hG+3}
v_min_u32 v{hG+8}, -2, v{hG+8}
v_min_u32 v{hG+9}, -2, v{hG+9}
s_cmp_eq_u32 s{sMode}, 0
s_cbranch_scc1 L_p2_slow
buffer_store_dwordx2 {vr(hG+8,2)}, v{hK}, {sr(SWS,4)}, 0 offen offset:{W_KV}
s_branch L_p2_done
L_p2_slow:
buffer_store_dwordx2 {vr(hG+8,2)}, v{hK}, {sr(SWS,4)}, 0 offen offset:{W_KV} sc1
L_p2_done:""")
    stamp(7)
    stamp_val(15, sCnt)
    for sh in (8, 4, 2, 1):
        for r in range(4):
            a(f"v_add_f32_dpp v{hX+r}, v{hX+r}, v{hX+r} row_ror:{sh} row_mask:0xf bank_mask:0xf")
    a(f"""v_cvt_pk_bf16_f32 v{hX}, v{hX}, v{hX+1}
v_cvt_pk_bf16_f32 v{hX+1}, v{hX+2}, v{hX+3}
ds_write_b64 v{hA+2}, {vr(hX,2)}
s_waitcnt lgkmcnt(0)""")
    stamp(8)
    a(f"""s_barrier                     ; B3
s_cmp_lg_u32 s{sJ}, 0
s_cbranch_scc1 L_fin
v_mov_b32 v{vT0}, 0
s_mov_b32 s{sT}, {W_E}
s_mov_b64 exec, 1
buffer_store_dwordx2 {vr(hX+4,2)}, v{vT0}, {sr(SWS,4)}, s{sT} offen
s_mov_b64 exec, -1
L_fin:""")
    if stamps:
        a(f"""
s_add_u32 s{SST}, s16, {STAMP_OFF}
s_addc_u32 s{SST+1}, s17, 0
s_mov_b32 s{SST+2}, {256*16*64}
s_mov_b32 s{SST+3}, 0x20000
s_lshl_b32 s{sT}, s2, 4
s_add_u32 s{sT}, s{sT}, s{sW}
s_lshl_b32 s{sT}, s{sT}, 6
v_lshlrev_b32 v{vT1}, 2, v{vL}
s_mov_b64 exec, 0xffff
buffer_store_dword v{vS}, v{vT1}, {sr(SST,4)}, s{sT} offen
""")
    a("L_end:\ns_endpgm")
    return a, k

def build(extra=None, **kw):
    a, k = gen(**kw)
    txt = '.amdgcn_target "amdgcn-amd-amdhsa--gfx950"\n.text\n' + a.text()
    hdr = HEADER + f"; @launch grid=(256,1,1) block=(576,1,1) lds={LDS_BYTES}\n"
    return hdr + txt + descriptor(k, NVGPR, sgpr=80)

if __name__ == '__main__':
    V = eval(open(sys.argv[1]).read())
    for n, kw in V.items():
        open(n + '.s', 'w').write(build(**kw))
    print(' '.join(n + '.s' for n in V))
```

```python
import sys
from asmlib import *
from gen2 import NAME, HEADER, LOG2E, CMUL, EPS, STAMP_OFF

sW, sH, sJ = 3, 18, 19
SK, SOUT, SOH, SWS, SOM = 20, 32, 36, 40, 44
sBase, sT, sU, sM0, sOff, sCnt, sMode, sXcc = 48, 49, 50, 51, 52, 53, 54, 55
sTag = 56
sTmp64 = 58
sStamp = 60
sStamp0 = 62
SST = 64
sProg, sNeed, sRot, sPo = 68, 69, 70, 71
WS_HEAD = 8192
W_KV, W_R, W_R2, W_E = 0, 4096, 4096 + 256, 4096 + 512
L_KQ, L_V, L_OM, L_PHI, L_KVB, L_Z = 0, 65536, 131072, 135168, 139264, 143360
L_FL = L_Z + 16
LDS_BYTES = L_Z + 64
vL, vN, vG, vT0, vT1, vT2, vS = 1, 2, 3, 4, 5, 6, 7
vFA = 8
vFL = 10
vF = 16
vM0, vM1, vTR0, vTR1, vPA = 21, 22, 23, 24, 25
vPhi, vZ = 26, 28
vB = 30
TA, TB = 34, 38
vP, vGm, vD2, vRcp = 42, 46, 50, 54
vOA, vZA = 58, 59
OM, FR, KVB, PK = 64, 96, 128, 160
NVGPR = 168
SPIN = 1 << 16
LSPIN = 1 << 20

def gen(NK=24, NV=24, NQ=20, stamps=False, lf='nt', sf='nt', gf='sc1', force_slow=False, name=None, rot=0, sleep=0, pk=True, h1delay=True, noclear=False, nopub=False, preread=None, cf='', pf='', fill=None, fillat=13, early_small=True, spread=0, segA=None, segB=None, gbit=3, h1at=None, zat=None):
    a = Asm()
    k = name or NAME + '_kernel'
    uid = [0]
    def stamp(i):
        if stamps:
            a(f"s_memrealtime s[{sStamp}:{sStamp+1}]\ns_waitcnt lgkmcnt(0)\nv_writelane_b32 v{vS}, s{sStamp}, {i}")
    def stamp_val(i, s):
        if stamps:
            a(f"v_writelane_b32 v{vS}, s{s}, {i}")
    def wait_flags(conds):
        uid[0] += 1
        lab = f"L_wf{uid[0]}"
        a(f"s_mov_b32 s{sCnt}, 0\n{lab}:")
        if len(conds) == 1:
            w = conds[0][0]
            a(f"ds_read_b32 v{vFL+w}, v{vFA} offset:{4*w}")
        else:
            a(f"ds_read_b128 {vr(vFL,4)}, v{vFA}")
        if sleep:
            a(f"s_sleep {sleep}")
        a(f"s_add_u32 s{sCnt}, s{sCnt}, 1\ns_cmp_ge_u32 s{sCnt}, {LSPIN}\ns_cbranch_scc1 {lab}_x\ns_waitcnt lgkmcnt(0)")
        for w, m in conds:
            a(f"v_cmp_gt_i32 vcc, {m}, v{vFL+w}\ns_cbranch_vccnz {lab}")
        a(f"{lab}_x:")
    a(f""".globl {k}
.p2align 8
.type {k},@function
{k}:""")
    if stamps:
        a(f"s_memrealtime s[{sStamp0}:{sStamp0+1}]\nv_mov_b32 v{vS}, 0")
    a(f"""
s_load_dwordx8 s[4:11], s[0:1], 0
s_cmp_ge_u32 s2, 256
s_cbranch_scc1 L_end
v_lshrrev_b32 v{vT0}, 6, v0
v_and_b32 v{vL}, 63, v0
s_and_b32 s{sH}, s2, 15
v_readfirstlane_b32 s{sW}, v{vT0}
s_lshr_b32 s{sJ}, s2, 4
s_lshl_b32 s{sT}, s{sH}, 20
s_lshl_b32 s{sU}, s{sJ}, 16
s_or_b32 s{sBase}, s{sT}, s{sU}
s_cmp_lg_u32 s{sW}, 0
s_cbranch_scc1 L_notloader
""")
    lA, lV = 16, 24
    a(f"""
s_setprio 2
v_bfe_u32 v{vT1}, v0, 5, 1
v_and_b32 v{vT2}, 31, v0
v_xor_b32 v{lA}, v{vT2}, v{vT1}
v_lshlrev_b32 v{lA}, 4, v{lA}
v_lshl_add_u32 v{lA}, v{vT1}, 9, v{lA}
s_mov_b32 s{SK+2}, 65536
s_mov_b32 s{SK+3}, 0x20000
v_xor_b32 v{lA+1}, 32, v{lA}
v_xor_b32 v{lA+2}, 64, v{lA}
v_xor_b32 v{lA+3}, 0x60, v{lA}
""")
    if rot:
        a(f"s_mul_i32 s{sRot}, s{sJ}, {rot}\ns_and_b32 s{sRot}, s{sRot}, 7\ns_lshl_b32 s{sOff}, s{sRot}, 13")
    else:
        a(f"s_mov_b32 s{sOff}, 0")
    a(f"""s_mov_b32 m0, s{sOff}
s_waitcnt lgkmcnt(0)
s_add_u32 s{SK}, s6, s{sBase}
s_addc_u32 s{SK+1}, s7, 0
""")
    if stamps:
        a(f"v_writelane_b32 v{vS}, s{sStamp0}, 0")
    for t in range(4):
        a(f"buffer_load_dwordx4 v{lA+t}, {sr(SK,4)}, s{sOff} offen offset:{t*1024} {lf} lds")
    for t in range(4, 8):
        a(f"v_xor_b32 v{lA+t}, {t*32 + 4096}, v{lA}")
    a(f"s_add_u32 m0, s{sOff}, 4096")
    for t in range(4, 8):
        a(f"buffer_load_dwordx4 v{lA+t}, {sr(SK,4)}, s{sOff} offen offset:{(t&3)*1024} {lf} lds")
    a(f"""s_mov_b32 s{SOM}, s10
s_mov_b32 s{SOM+1}, s11
s_mov_b32 s{SOM+2}, 4096
s_mov_b32 s{SOM+3}, 0x20000
s_mov_b32 m0, {L_OM}
v_mov_b32 v{vFA}, {L_FL}
v_mov_b32 v{vFL}, 0
v_mov_b32 v{vFL+1}, 0
v_mov_b32 v{vFL+2}, 0
v_mov_b32 v{vFL+3}, 0""")
    for t in range(4):
        a(f"buffer_load_dwordx4 v{lA+t}, {sr(SOM,4)}, 0 offen offset:{t*1024} lds")
    a(f"""s_mov_b64 exec, 1
ds_write_b128 v{vFA}, {vr(vFL,4)}
s_mov_b64 exec, -1
v_lshlrev_b32 v{vT0}, 1, v{vT1}
v_xor_b32 v{lV}, v{vT2}, v{vT0}
v_lshlrev_b32 v{lV}, 4, v{lV}
v_lshl_add_u32 v{lV}, v{vT1}, 9, v{lV}""")
    for t in range(1, 8):
        a(f"v_xor_b32 v{lV+t}, {(t&3)*64 + (t>>2)*4096}, v{lV}")
    a("s_waitcnt lgkmcnt(0)\ns_barrier")
    stamp(1)
    def tile_loop(lab, first, last, N, areg, ldsbase, extra_lag=0):
        pos = (N - 1) % 8
        lag = (N - 1) // 8
        a(f"s_mov_b32 s{sProg}, {first - lag}\n{lab}:")
        for t in range(8):
            a(f"s_waitcnt vmcnt({N-1})")
            if t == pos:
                a(f"v_mov_b32 v{vFL}, s{sProg}\ns_mov_b64 exec, 1\nds_max_i32 v{vFA}, v{vFL}\ns_mov_b64 exec, -1")
            if t == 0:
                a(f"s_add_u32 m0, s{sOff}, {ldsbase}" if ldsbase else f"s_mov_b32 m0, s{sOff}")
            if t == 4:
                a(f"s_add_u32 m0, s{sOff}, {ldsbase + 4096}")
            if t in (0, 4) and t != pos:
                a("s_nop 0")
            a(f"buffer_load_dwordx4 v{areg+t}, {sr(SK,4)}, s{sOff} offen offset:{(t&3)*1024} {lf} lds")
        a(f"""s_add_u32 s{sOff}, s{sOff}, 8192
s_and_b32 s{sOff}, s{sOff}, 0xffff
s_add_u32 s{sProg}, s{sProg}, 1
s_cmp_lt_i32 s{sProg}, {last - lag}
s_cbranch_scc1 {lab}""")
    a(f"s_add_u32 s{sOff}, s{sOff}, 8192\ns_and_b32 s{sOff}, s{sOff}, 0xffff")
    def loader(tag, segs):
        for (first, last, N) in segs:
            if first == 8:
                stamp(2)
                a(f"s_add_u32 s{SK}, s8, s{sBase}\ns_addc_u32 s{SK+1}, s9, 0\ns_mov_b32 s{sOff}, 0")
            if first == 16:
                stamp(3)
                a(f"s_add_u32 s{SK}, s4, s{sBase}\ns_addc_u32 s{SK+1}, s5, 0")
                a(f"s_lshl_b32 s{sOff}, s{sRot}, 13" if rot else f"s_mov_b32 s{sOff}, 0")
                wait_flags([(1, 8)])
            isv = 8 <= first < 16
            tile_loop(f'L_ld{tag}{first}', first, last, N, lV if isv else lA, L_V if isv else L_KQ)
        stamp(4)
        lagq = (segs[-1][2] - 1) // 8
        a("s_mov_b64 exec, 1")
        for done in range(24 - lagq, 25):
            a(f"s_waitcnt vmcnt({(24-done)*8})\nv_mov_b32 v{vFL}, {done}\nds_max_i32 v{vFA}, v{vFL}")
        a("s_mov_b64 exec, -1")
        stamp(5)
        a("s_branch L_fin" if stamps else "s_endpgm")
    segA = segA or [(1, 8, NK), (8, 16, NV), (16, 24, NQ)]
    if segB:
        a(f"s_bitcmp1_b32 s2, {gbit}\ns_cbranch_scc1 L_loaderB")
    loader('A', segA)
    if segB:
        a("L_loaderB:")
        loader('B', segB)
    a(f"""L_notloader:
s_load_dwordx2 s[12:13], s[0:1], 32
s_load_dwordx2 s[16:17], s[0:1], 48
v_and_b32 v{vN}, 15, v0
v_bfe_u32 v{vG}, v0, 4, 2
v_mov_b32 v{vFA}, {L_FL}
s_mul_i32 s{sT}, s{sH}, {WS_HEAD}
s_mov_b32 s{SWS+2}, {WS_HEAD}
s_mov_b32 s{SWS+3}, 0x20000
s_mov_b32 s{SOUT+2}, 65536
s_mov_b32 s{SOUT+3}, 0x20000
s_waitcnt lgkmcnt(0)
s_add_u32 s{SWS}, s16, s{sT}
s_addc_u32 s{SWS+1}, s17, 0
s_add_u32 s{SOUT}, s12, s{sBase}
s_addc_u32 s{SOUT+1}, s13, 0
""")
    if stamps:
        a(f"v_writelane_b32 v{vS}, s{sStamp0}, 0")
    a(f"""s_cmp_eq_u32 s{sW}, 1
s_cbranch_scc1 L_helper
s_sub_u32 s{sW}, s{sW}, 2
""")
    if rot:
        a(f"s_mul_i32 s{sRot}, s{sJ}, {rot}\ns_sub_u32 s{sNeed}, s{sW}, s{sRot}\ns_and_b32 s{sNeed}, s{sNeed}, 7\ns_add_u32 s{sNeed}, s{sNeed}, 1")
    else:
        a(f"s_add_u32 s{sNeed}, s{sW}, 1")
    a(f"""
v_xor_b32 v{vT0}, v{vG}, v{vN}
v_lshlrev_b32 v{vT0}, 4, v{vT0}
v_lshl_add_u32 v{vT0}, v{vN}, 9, v{vT0}
s_lshl_b32 s{sT}, s{sW}, 13
v_add_u32 v{vF}, s{sT}, v{vT0}
v_xor_b32 v{vF+1}, 64, v{vF}
v_xor_b32 v{vF+2}, 0x80, v{vF}
v_xor_b32 v{vF+3}, 0xc0, v{vF}
v_lshlrev_b32 v{vT0}, 11, v{vG}
v_lshl_add_u32 v{vT0}, v{vN}, 4, v{vT0}
v_add_u32 v{vOA}, s{sT}, v{vT0}
v_and_b32 v{vT1}, 7, v{vN}
v_xor_b32 v{vT0}, v{vG}, v{vT1}
v_lshlrev_b32 v{vT0}, 4, v{vT0}
v_lshl_add_u32 v{vT0}, v{vT1}, 9, v{vT0}
v_add_u32 v{vB}, {L_OM}, v{vT0}
v_xor_b32 v{vB+1}, 64, v{vB}
v_xor_b32 v{vB+2}, 0x80, v{vB}
v_xor_b32 v{vB+3}, 0xc0, v{vB}
v_lshlrev_b32 v{vT0}, 2, v{vG}
v_sub_u32 v{vT0}, v{vN}, v{vT0}
v_mov_b32 v{vT1}, 0xffff
v_mov_b32 v{vT2}, 0xffff0000
v_cmp_eq_u32 vcc, 0, v{vT0}
v_cmp_eq_u32 s[{sTmp64}:{sTmp64+1}], 1, v{vT0}
v_cndmask_b32 v{vM0}, 0, v{vT1}, vcc
v_cmp_eq_u32 vcc, 2, v{vT0}
v_cndmask_b32 v{vM0}, v{vM0}, v{vT2}, s[{sTmp64}:{sTmp64+1}]
v_cmp_eq_u32 s[{sTmp64}:{sTmp64+1}], 3, v{vT0}
v_cndmask_b32 v{vM1}, 0, v{vT1}, vcc
v_and_b32 v{TA}, 0x3e803e80, v{vM0}
v_cndmask_b32 v{vM1}, v{vM1}, v{vT2}, s[{sTmp64}:{sTmp64+1}]
v_and_b32 v{TA+1}, 0x3e803e80, v{vM1}
v_lshrrev_b32 v{vT0}, 2, v{vL}
v_and_b32 v{vT1}, 7, v{vT0}
s_lshl_b32 s{sT}, s{sW}, 1
v_xor_b32 v{vT1}, s{sT}, v{vT1}
v_lshlrev_b32 v{vT1}, 5, v{vT1}
v_lshl_add_u32 v{vTR0}, v{vT0}, 9, v{vT1}
v_and_b32 v{vT1}, 3, v{vL}
v_lshl_add_u32 v{vTR0}, v{vT1}, 3, v{vTR0}
v_add_u32 v{vTR0}, {L_V}, v{vTR0}
v_xor_b32 v{vTR1}, 32, v{vTR0}
v_lshlrev_b32 v{vPA}, 4, v{vL}
v_add_u32 v{vPA}, {L_PHI}, v{vPA}
v_and_b32 v{vZA}, 1, v{vG}
v_lshlrev_b32 v{vZA}, 3, v{vZA}
v_add_u32 v{vZA}, {L_Z}, v{vZA}
s_barrier                     ; B0
""")
    stamp(1)
    wait_flags([(0, f"s{sNeed}")])
    stamp(2)
    def phi(isq, pre_om):
        if pre_om:
            for u in range(8):
                a(f"ds_read_b128 {vr(OM+4*u,4)}, v{vB+(u&3)} offset:{256*(u>>2)}")
                a(f"ds_read_b128 {vr(FR+4*u,4)}, v{vF+(u&3)} offset:{256*(u>>2)}")
            waits = [min(15, 14 - 2*u) for u in range(8)]
        else:
            for u in range(8):
                a(f"ds_read_b128 {vr(FR+4*u,4)}, v{vF+(u&3)} offset:{256*(u>>2)}")
            waits = [7 - u for u in range(8)]
        gd, cc = (TB+2, TA+2) if isq else (TA+2, TB+2)
        a(f"v_mov_b32 v{cc}, 0xbd00bd00\nv_mov_b32 v{cc+1}, 0xbd00bd00")
        for u in range(8):
            a(f"s_waitcnt lgkmcnt({waits[u]})")
            c1 = '0' if u == 0 else vr(vP, 4)
            c2 = '0' if u == 0 else vr(vGm, 4)
            a(f"v_mfma_f32_16x16x32_bf16 {vr(vGm,4)}, {vr(FR+4*u,4)}, {vr(FR+4*u,4)}, {c2}")
            if isq:
                a(f"v_mfma_f32_16x16x32_bf16 {vr(vP,4)}, {vr(OM+4*u,4)}, {vr(FR+4*u,4)}, {c1}")
            else:
                a(f"v_mfma_f32_16x16x32_bf16 {vr(vP,4)}, {vr(FR+4*u,4)}, {vr(OM+4*u,4)}, {c1}")
        a(f"""
v_cvt_pk_bf16_f32 v{gd}, v{vGm}, v{vGm+1}
v_cvt_pk_bf16_f32 v{gd+1}, v{vGm+2}, v{vGm+3}
v_and_b32 v{gd}, v{gd}, v{vM0}
v_and_b32 v{gd+1}, v{gd+1}, v{vM1}
v_cvt_pk_bf16_f32 v{TB}, v{vP}, v{vP+1}
v_cvt_pk_bf16_f32 v{TB+1}, v{vP+2}, v{vP+3}
v_mfma_f32_16x16x32_bf16 {vr(vD2,4)}, {vr(TA,4)}, {vr(TB,4)}, 0
""")
        for op in (lambda r: f"v_cvt_pk_bf16_f32 v{r}, 0, v{r}",
                   lambda r: f"v_mul_f32 v{r}, {LOG2E}, v{r}",
                   lambda r: f"v_exp_f32 v{r}, v{r}",
                   lambda r: f"v_cvt_pk_bf16_f32 v{r}, 0, v{r}",
                   lambda r: f"v_mul_f32 v{r}, {CMUL}, v{r}",
                   lambda r: f"v_cvt_pk_bf16_f32 v{r}, 0, v{r}",
                   lambda r: f"v_add_f32 v{r}, {EPS}, v{r}"):
            for r in range(4):
                a(op(vD2 + r))
        a(f"""
v_cvt_pk_bf16_f32 v{vPhi}, v{vD2}, v{vD2+1}
v_cvt_pk_bf16_f32 v{vPhi+1}, v{vD2+2}, v{vD2+3}
""")
    phi(False, True)
    a(f"""
s_lshr_b32 s{sT}, s{sW}, 1
s_lshl_b32 s{sT}, s{sT}, 10
s_and_b32 s{sU}, s{sW}, 1
s_lshl_b32 s{sU}, s{sU}, 3
s_add_u32 s{sT}, s{sT}, s{sU}
v_add_u32 v{vT0}, s{sT}, v{vPA}
v_mov_b32 v{vT1}, 1
ds_write_b64 v{vT0}, {vr(vPhi,2)}
s_mov_b64 exec, 1
ds_add_u32 v{vFA}, v{vT1} offset:4
s_mov_b64 exec, -1
v_and_b32 v{vT0}, 1, v{vG}
v_lshlrev_b32 v{vT0}, 11, v{vT0}
v_lshl_add_u32 v{vT0}, v{vN}, 6, v{vT0}
v_lshrrev_b32 v{vT1}, 2, v{vN}
v_lshl_add_u32 v{vT0}, v{vT1}, 4, v{vT0}
v_add_u32 v{vB}, {L_KVB}, v{vT0}
v_xor_b32 v{vB+1}, 16, v{vB}
v_xor_b32 v{vB+2}, 32, v{vB}
v_xor_b32 v{vB+3}, 48, v{vB}
s_and_b32 s{sU}, s{sJ}, {spread}
s_lshl_b32 s{sU}, s{sU}, 13
s_lshl_b32 s{sT}, s{sW}, 10
s_add_u32 s{sT}, s{sT}, s{sU}
v_lshl_add_u32 v{vT2}, v{vL}, 4, s{sT}
s_add_u32 s{sNeed}, s{sNeed}, 16
""")
    stamp(3)
    AF, BF, D0, D1 = KVB, FR, vP, vGm
    def v_reads(s):
        for u in range(2):
            for hh in range(2):
                a(f"ds_read_b64_tr_b16 {vr(BF+8*s+4*u+2*hh,2)}, v{vTR0+u} offset:{(32*s+16*hh)*512}")
    def v_mf(s):
        c = lambda D: '0' if s == 0 else vr(D, 4)
        a(f"""v_mfma_f32_16x16x32_bf16 {vr(D0,4)}, {vr(AF+4*s,4)}, {vr(BF+8*s,4)}, {c(D0)}
v_mfma_f32_16x16x32_bf16 {vr(D1,4)}, {vr(AF+4*s,4)}, {vr(BF+8*s+4,4)}, {c(D1)}""")
    wait_flags([(0, 14), (1, 8), (2, 1)])
    stamp(4)
    a(f"v_readfirstlane_b32 s{sMode}, v{vFL+2}")
    for s in range(4):
        a(f"ds_read_b128 {vr(AF+4*s,4)}, v{vPA} offset:{1024*s}")
    v_reads(0); v_reads(1)
    a("s_waitcnt lgkmcnt(4)"); v_mf(0)
    v_reads(2)
    a("s_waitcnt lgkmcnt(4)"); v_mf(1)
    a("s_waitcnt lgkmcnt(0)"); v_mf(2)
    a(f"v_cmp_gt_u32 s[{sTmp64}:{sTmp64+1}], 32, v{vL}")
    wait_flags([(0, 16)])
    stamp(5)
    v_reads(3)
    a(f"s_cmp_eq_u32 s{sMode}, 1\ns_waitcnt lgkmcnt(0)")
    v_mf(3)
    for r in range(4):
        a(f"v_cndmask_b32 v{vD2+r}, v{D1+r}, v{D0+r}, s[{sTmp64}:{sTmp64+1}]")
    for r in range(4):
        a(f"v_min_u32 v{vD2+r}, -2, v{vD2+r}")
    a(f"""s_cbranch_scc0 L_pub_slow
buffer_store_dwordx4 {vr(vD2,4)}, v{vT2}, {sr(SOUT,4)}, 0 offen {pf}
s_branch L_pub_done
L_pub_slow:
buffer_store_dwordx4 {vr(vD2,4)}, v{vT2}, {sr(SOUT,4)}, 0 offen sc1
L_pub_done:""")
    if h1at is not None:
        a(f"v_mov_b32 v{vT1}, 1\ns_mov_b64 exec, 1\nds_add_u32 v{vFA}, v{vT1} offset:4\ns_mov_b64 exec, -1")
    stamp(6)
    wait_flags([(0, f"s{sNeed}")])
    stamp(7)
    phi(True, False)
    a(f"""v_cndmask_b32 v{vPhi}, 0, v{vPhi}, s[{sTmp64}:{sTmp64+1}]
v_cndmask_b32 v{vPhi+1}, 0, v{vPhi+1}, s[{sTmp64}:{sTmp64+1}]""")
    stamp(8)
    wait_flags([(3, 1)])
    a(f"""ds_read_b64 {vr(vZ,2)}, v{vZA}
s_waitcnt lgkmcnt(0)
v_mfma_f32_16x16x16_bf16 {vr(vD2,4)}, {vr(vPhi,2)}, {vr(vZ,2)}, 0""")
    for op in (lambda r: f"v_cvt_pk_bf16_f32 v{vRcp+r}, 0, v{vD2+r}",
               lambda r: f"v_add_f32 v{vRcp+r}, {EPS}, v{vRcp+r}",
               lambda r: f"v_cvt_pk_bf16_f32 v{vRcp+r}, 0, v{vRcp+r}",
               lambda r: f"v_rcp_f32 v{vRcp+r}, v{vRcp+r}"):
        for r in range(4):
            a(op(r))
    stamp(9)
    wait_flags([(3, 2)])
    stamp(10)
    for i in range(8):
        a(f"ds_read_b128 {vr(KVB+4*i,4)}, v{vB+(i&3)} offset:{1024*(i>>2)}")
    ACC = OM
    def out_mf(hf, cs):
        for c in cs:
            i = hf*4 + (c >> 1)
            if c % 2 == 0:
                a(f"s_waitcnt lgkmcnt({7-i})")
            a(f"v_mfma_f32_16x16x16_bf16 {vr(ACC+32*hf+4*c,4)}, {vr(vPhi,2)}, {vr(KVB+4*i+2*(c&1),2)}, 0")
    out_mf(0, range(8))
    cnt = 0
    for hf in range(2):
        for r in range(4):
            regs = [ACC+32*hf+4*c+r for c in range(8)]
            if pk:
                if r % 2 == 0:
                    for x in regs:
                        a(f"v_cvt_pk_bf16_f32 v{x}, 0, v{x}")
                        a(f"v_cvt_pk_bf16_f32 v{x+1}, 0, v{x+1}")
                        a(f"v_pk_mul_f32 {vr(x,2)}, {vr(x,2)}, {vr(vRcp+r,2)}")
            else:
                for x in regs:
                    a(f"v_cvt_pk_bf16_f32 v{x}, 0, v{x}")
                for x in regs:
                    a(f"v_mul_f32 v{x}, v{vRcp+r}, v{x}")
            pkr = PK + 4*(cnt % 2); cnt += 1
            for c2 in range(4):
                a(f"v_cvt_pk_bf16_f32 v{pkr+c2}, v{regs[2*c2]}, v{regs[2*c2+1]}")
            a(f"buffer_store_dwordx4 {vr(pkr,4)}, v{vOA}, {sr(SOUT,4)}, 0 offen offset:{r*512+hf*256} {sf}")
            if hf == 0:
                out_mf(1, range(2*r, 2*r+2))
            if cnt == 1:
                stamp(11)
    stamp(12)
    if stamps:
        a("s_waitcnt vmcnt(0)")
        stamp(13)
        a(f"s_add_u32 s{sW}, s{sW}, 2\ns_branch L_fin")
    else:
        a("s_endpgm")
    hA, hC, hZ, hR, hK = 16, 20, 21, 22, 23
    hONE, hAF, hD, hG = 24, 28, 44, 64
    hX = 48
    a("L_helper:")
    a(f"""s_setprio 3
s_load_dwordx2 s[{sTag}:{sTag+1}], s[{SWS}:{SWS+1}], {W_E}
s_lshl_b32 s{sT}, s{sH}, 20
s_add_u32 s{SOH}, s12, s{sT}
s_addc_u32 s{SOH+1}, s13, 0
s_mov_b32 s{SOH+2}, 0x100000
s_mov_b32 s{SOH+3}, 0x20000
s_getreg_b32 s{sXcc}, hwreg(HW_REG_XCC_ID, 0, 4)
v_mov_b32 v{hONE}, -1
v_mov_b32 v{hONE+1}, -1
v_mov_b32 v{hONE+2}, -1
v_mov_b32 v{hONE+3}, -1
v_lshlrev_b32 v{hC}, 4, v{vL}
s_and_b32 s{sPo}, s{sJ}, {spread}
s_add_u32 s{sU}, s{sPo}, 1
s_and_b32 s{sU}, s{sU}, 7
s_lshl_b32 s{sU}, s{sU}, 13
s_lshl_b32 s{sPo}, s{sPo}, 13
v_add_u32 v{hX}, 4096, v{hC}
v_and_b32 v{vT0}, 0x2f, v{vL}
v_cmp_eq_u32 vcc, 0, v{vT0}
v_lshlrev_b32 v{vT0}, 4, v{vG}
v_add_u32 v{vT0}, s{sU}, v{vT0}
v_mov_b32 v{vT1}, 0x7fffff00
v_cndmask_b32 v{hZ}, v{vT1}, v{vT0}, vcc
v_lshrrev_b32 v{vT0}, 3, v{vN}
s_lshl_b32 s{sT}, s{sJ}, 1
v_add_u32 v{vT0}, s{sT}, v{vT0}
v_bfe_u32 v{vT2}, v{vT0}, 2, 2
v_lshlrev_b32 v{hK}, 6, v{vT0}
v_bfe_u32 v{vT0}, v{vN}, 1, 2
v_xor_b32 v{vT0}, v{vT0}, v{vT2}
v_lshl_add_u32 v{hK}, v{vT0}, 4, v{hK}
v_and_b32 v{vT0}, 1, v{vN}
v_lshl_add_u32 v{hK}, v{vT0}, 3, v{hK}
v_lshl_add_u32 v{hK}, v{vG}, 11, v{hK}
v_cmp_gt_u32 vcc, 32, v{vL}
v_lshlrev_b32 v{hR}, 4, v{vN}
s_nop 0
v_cndmask_b32 v{hK}, v{vT1}, v{hK}, vcc
s_barrier                     ; B0
""")
    def clear(fl):
        for t in range(8):
            a(f"buffer_store_dwordx4 {vr(hONE,4)}, v{hC if t < 4 else hX}, {sr(SOUT,4)}, s{sPo} offen offset:{(t&3)*1024} {fl}")
        a(f"buffer_store_dwordx4 {vr(hONE,4)}, v{hZ}, {sr(SOUT,4)}, 0 offen {fl}")
        a(f"buffer_store_dwordx2 {vr(hONE,2)}, v{hK}, {sr(SWS,4)}, 0 offen offset:{W_KV} {fl}")
    def ready(off):
        a(f"""s_lshl_b32 s{sT}, s{sJ}, 4
s_add_u32 s{sT}, s{sT}, {off}
v_mov_b32 v{vT0}, 0
s_waitcnt vmcnt(0)
s_mov_b64 exec, 1
buffer_store_dwordx4 {vr(hX+4,4)}, v{vT0}, {sr(SWS,4)}, s{sT} offen sc1
s_mov_b64 exec, -1""")
    def wait_ready(off, lab):
        a(f"""s_mov_b32 s{sCnt}, 0
s_mov_b32 s{sT}, {off}
{lab}:
buffer_load_dwordx4 {vr(hG,4)}, v{hR}, {sr(SWS,4)}, s{sT} offen sc1
s_add_u32 s{sCnt}, s{sCnt}, 1
s_waitcnt vmcnt(0)
v_cmp_ne_u64 vcc, s[{sTag}:{sTag+1}], {vr(hG,2)}
s_cmp_ge_u32 s{sCnt}, {SPIN}
s_cbranch_scc1 {lab}_done
s_cbranch_vccnz {lab}
{lab}_done:""")
    if preread is not None:
        for t in range(8):
            a(f"buffer_load_dwordx4 {vr(hG+4*t,4)}, v{hC if t < 4 else hX}, {sr(SOUT,4)}, s{sPo} offen offset:{(t&3)*1024} {preread}")
        a(f"buffer_load_dwordx4 {vr(hAF,4)}, v{hZ}, {sr(SOUT,4)}, 0 offen {preread}")
        a(f"buffer_load_dwordx2 {vr(hAF+4,2)}, v{hK}, {sr(SWS,4)}, 0 offen offset:{W_KV} {preread}")
    if fill is not None and early_small:
        a(f"buffer_load_dword v{hAF}, v{hZ}, {sr(SOUT,4)}, 0 offen {fill}")
        a(f"buffer_load_dword v{hAF+4}, v{hK}, {sr(SWS,4)}, 0 offen offset:{W_KV} {fill}")
    if not noclear:
        clear(cf)
    a(f"""s_waitcnt lgkmcnt(0)
s_add_u32 s{sTag}, s{sTag}, 1
s_addc_u32 s{sTag+1}, s{sTag+1}, 0
v_mov_b32 v{hX+4}, s{sTag}
v_mov_b32 v{hX+5}, s{sTag+1}
v_mov_b32 v{hX+6}, s{sXcc}
v_mov_b32 v{hX+7}, 0""")
    ready(W_R)
    stamp(1)
    wait_flags([(0, 7)])
    stamp(2)
    wait_ready(W_R, 'L_rdy1')
    stamp(3)
    stamp_val(13, sCnt)
    a(f"""v_cmp_ne_u32 vcc, s{sXcc}, v{hG+2}
s_mov_b32 s{sMode}, 1""")
    if not force_slow:
        a("s_cbranch_vccz L_mode_done")
    a(f"s_mov_b32 s{sMode}, 2")
    clear('sc1')
    ready(W_R2)
    wait_ready(W_R2, 'L_rdy2')
    a(f"""L_mode_done:
v_mov_b32 v{vT1}, s{sMode}
s_mov_b64 exec, 1
ds_write_b32 v{vFA}, v{vT1} offset:8
s_mov_b64 exec, -1
v_add_u32 v{vT0}, {L_PHI}, v{hC}
v_mov_b32 v{hONE}, 0x3f803f80
v_mov_b32 v{hONE+1}, 0x3f803f80
v_mov_b32 v{hONE+2}, 0x3f803f80
v_mov_b32 v{hONE+3}, 0x3f803f80
v_lshrrev_b32 v{vT1}, 5, v{vL}
v_mul_u32_u24 v{hA}, {65536 + 8192*(spread & 1)}, v{vT1}
v_and_b32 v{vT1}, 31, v{vL}
v_lshl_add_u32 v{hA}, v{vT1}, 4, v{hA}
s_lshl_b32 s{sT}, s{sJ}, 9
v_add_u32 v{hA}, s{sT}, v{hA}
v_and_b32 v{vT1}, 1, v{vG}
v_lshlrev_b32 v{hA+2}, 3, v{vT1}
v_add_u32 v{hA+2}, {L_Z}, v{hA+2}
v_lshlrev_b32 v{vT1}, 4, v{vT1}
v_lshl_add_u32 v{hA+1}, v{vN}, 16, v{vT1}
v_and_b32 v{vT1}, {spread}, v{vN}
v_add_u32 v{vT1}, 1, v{vT1}
v_and_b32 v{vT1}, 7, v{vT1}
v_lshl_add_u32 v{hA+1}, v{vT1}, 13, v{hA+1}
v_add_u32 v{hA+3}, {L_KVB}, v{hC}""")
    wait_flags([(1, 8)])
    stamp(4)
    for s in range(4):
        a(f"ds_read_b128 {vr(hAF+4*s,4)}, v{vT0} offset:{1024*s}")
    for s in range(4):
        a(f"s_waitcnt lgkmcnt({3-s})\nv_mfma_f32_16x16x32_bf16 {vr(hD,4)}, {vr(hAF+4*s,4)}, {vr(hONE,4)}, {'0' if s == 0 else vr(hD,4)}")
    for r in range(4):
        a(f"v_min_u32 v{hD+r}, -2, v{hD+r}")
    a(f"""s_cmp_eq_u32 s{sMode}, 1
s_cbranch_scc0 L_z_slow
buffer_store_dwordx4 {vr(hD,4)}, v{hZ}, {sr(SOUT,4)}, 0 offen
s_branch L_z_done
L_z_slow:
buffer_store_dwordx4 {vr(hD,4)}, v{hZ}, {sr(SOUT,4)}, 0 offen sc1
L_z_done:""")
    if fill is not None:
        a(f"v_lshlrev_b32 v{vT2}, 7, v{vL}")
        wait_flags([(0, fillat)])
        a(f"buffer_load_dword v{hAF}, v{vT2}, {sr(SOUT,4)}, s{sPo} offen {fill}")
    wait_flags([(0, zat or (16 if h1delay else 14))])
    stamp(5)
    a(f"""s_mov_b32 s{sCnt}, 0
L_zg:
buffer_load_dwordx4 {vr(hX,4)}, v{hA+1}, {sr(SOH,4)}, 0 offen {gf}
s_add_u32 s{sCnt}, s{sCnt}, 1
s_waitcnt vmcnt(0)
v_max3_u32 v{vT0}, v{hX}, v{hX+1}, v{hX+2}
v_max_u32 v{vT0}, v{vT0}, v{hX+3}
v_cmp_eq_u32 vcc, -1, v{vT0}
s_cmp_ge_u32 s{sCnt}, {SPIN}
s_cbranch_scc1 L_zg_done
s_cbranch_vccnz L_zg
L_zg_done:""")
    stamp(6)
    stamp_val(14, sCnt)
    def h1_issue():
        for i in range(8):
            a(f"s_mov_b32 s{sT}, {i*0x20000 + ((2*i) & spread)*8192}")
            a(f"buffer_load_dwordx4 {vr(hG+4*i,4)}, v{hA}, {sr(SOH,4)}, s{sT} offen {gf}")
    if h1at is None:
        h1_issue()
    for sh in (8, 4, 2, 1):
        for r in range(4):
            a(f"v_add_f32_dpp v{hX+r}, v{hX+r}, v{hX+r} row_ror:{sh} row_mask:0xf bank_mask:0xf")
    a(f"""v_cvt_pk_bf16_f32 v{hX}, v{hX}, v{hX+1}
v_cvt_pk_bf16_f32 v{hX+1}, v{hX+2}, v{hX+3}
v_mov_b32 v{vT1}, 1
s_mov_b64 exec, 0x10001
ds_write_b64 v{hA+2}, {vr(hX,2)}
ds_write_b32 v{vFA}, v{vT1} offset:12
s_mov_b64 exec, -1
""")
    if h1at is not None:
        wait_flags([(1, 16), (0, h1at)])
        stamp(6)
        a(f"s_mov_b32 s{sCnt}, 0\nL_h1:")
    else:
        a(f"s_mov_b32 s{sCnt}, 0\ns_branch L_h1_check\nL_h1:")
    h1_issue()
    a(f"L_h1_check:\ns_add_u32 s{sCnt}, s{sCnt}, 1")
    for i in range(8):
        a(f"s_waitcnt vmcnt({7-i})")
        b = hG + 4*i
        if i == 0:
            a(f"v_max3_u32 v{vT0}, v{b}, v{b+1}, v{b+2}\nv_max_u32 v{vT0}, v{vT0}, v{b+3}")
        else:
            a(f"v_max3_u32 v{vT0}, v{vT0}, v{b}, v{b+1}\nv_max3_u32 v{vT0}, v{vT0}, v{b+2}, v{b+3}")
            a(f"v_pk_add_f32 {vr(hG,2)}, {vr(hG,2)}, {vr(b,2)}\nv_pk_add_f32 {vr(hG+2,2)}, {vr(hG+2,2)}, {vr(b+2,2)}")
    a(f"""v_cmp_eq_u32 vcc, -1, v{vT0}
s_cmp_ge_u32 s{sCnt}, {SPIN}
s_cbranch_scc1 L_h1_done
s_cbranch_vccnz L_h1
L_h1_done:""")
    for r in range(4):
        a(f"v_mov_b32 v{hG+4+r}, v{hG+r}")
    for r in range(4):
        a(f"v_permlane32_swap_b32 v{hG+r}, v{hG+4+r}")
    a(f"""v_pk_add_f32 {vr(hG,2)}, {vr(hG,2)}, {vr(hG+4,2)}
v_pk_add_f32 {vr(hG+2,2)}, {vr(hG+2,2)}, {vr(hG+6,2)}
v_cvt_pk_bf16_f32 v{hG+8}, v{hG}, v{hG+1}
v_cvt_pk_bf16_f32 v{hG+9}, v{hG+2}, v{hG+3}
v_min_u32 v{hG+8}, -2, v{hG+8}
v_min_u32 v{hG+9}, -2, v{hG+9}
s_cmp_eq_u32 s{sMode}, 1
s_cbranch_scc0 L_p2_slow
buffer_store_dwordx2 {vr(hG+8,2)}, v{hK}, {sr(SWS,4)}, 0 offen offset:{W_KV}
s_branch L_p2_done
L_p2_slow:
buffer_store_dwordx2 {vr(hG+8,2)}, v{hK}, {sr(SWS,4)}, 0 offen offset:{W_KV} sc1
L_p2_done:""")
    stamp(7)
    stamp_val(15, sCnt)
    G2 = hG + 16
    a(f"s_mov_b32 s{sCnt}, 0\nv_mov_b32 v{vT1}, 2\ns_waitcnt vmcnt(0)\nL_h2:")
    for i in range(4):
        a(f"buffer_load_dwordx4 {vr(G2+4*i,4)}, v{hC}, {sr(SWS,4)}, 0 offen offset:{W_KV+1024*i} {gf}")
    a(f"s_add_u32 s{sCnt}, s{sCnt}, 1")
    for i in range(4):
        b = G2 + 4*i
        a(f"s_waitcnt vmcnt({3-i})")
        if i == 0:
            a(f"v_max3_u32 v{vT0}, v{b}, v{b+1}, v{b+2}\nv_max_u32 v{vT0}, v{vT0}, v{b+3}")
        else:
            a(f"v_max3_u32 v{vT0}, v{vT0}, v{b}, v{b+1}\nv_max3_u32 v{vT0}, v{vT0}, v{b+2}, v{b+3}")
        a(f"ds_write_b128 v{hA+3}, {vr(b,4)} offset:{1024*i}")
    a(f"""v_cmp_eq_u32 vcc, -1, v{vT0}
s_cmp_ge_u32 s{sCnt}, {SPIN}
s_cbranch_scc1 L_h2_done
s_waitcnt lgkmcnt(0)
s_cbranch_vccnz L_h2
L_h2_done:
s_mov_b64 exec, 1
ds_write_b32 v{vFA}, v{vT1} offset:12
s_mov_b64 exec, -1""")
    stamp(8)
    stamp_val(12, sCnt)
    a(f"""s_cmp_lg_u32 s{sJ}, 0
s_cbranch_scc1 L_fin
v_mov_b32 v{vT0}, 0
s_mov_b32 s{sT}, {W_E}
s_mov_b64 exec, 1
buffer_store_dwordx2 {vr(hX+4,2)}, v{vT0}, {sr(SWS,4)}, s{sT} offen
s_mov_b64 exec, -1
L_fin:""")
    if stamps:
        a(f"""
s_load_dwordx2 s[16:17], s[0:1], 48
s_waitcnt lgkmcnt(0)
s_add_u32 s{SST}, s16, {STAMP_OFF}
s_addc_u32 s{SST+1}, s17, 0
s_mov_b32 s{SST+2}, {256*16*64}
s_mov_b32 s{SST+3}, 0x20000
s_lshl_b32 s{sT}, s2, 4
s_add_u32 s{sT}, s{sT}, s{sW}
s_lshl_b32 s{sT}, s{sT}, 6
v_lshlrev_b32 v{vT1}, 2, v{vL}
s_mov_b64 exec, 0xffff
buffer_store_dword v{vS}, v{vT1}, {sr(SST,4)}, s{sT} offen
""")
    a("L_end:\ns_endpgm")
    return a, k

def build(**kw):
    a, k = gen(**kw)
    txt = '.amdgcn_target "amdgcn-amd-amdhsa--gfx950"\n.text\n' + a.text()
    hdr = HEADER + f"; @launch grid=(256,1,1) block=(640,1,1) lds={LDS_BYTES}\n"
    return hdr + txt + descriptor(k, NVGPR, sgpr=80)

if __name__ == '__main__':
    V = eval(open(sys.argv[1]).read())
    for n, kw in V.items():
        open(n + '.s', 'w').write(build(**kw))
    print(' '.join(n + '.s' for n in V))
```

```python
import sys
from asmlib import *
import gen3, gen1
from gen2 import HEADER, STAMP_OFF

def amp_kernel(a, name, idx, K, stat='max', woff=2, wmask=7):
    a(f""".globl {name}
.p2align 8
.type {name},@function
{name}:""")
    red = {'max': 'v_max_i32', 'min': 'v_min_i32', 'avg': 'v_add_u32'}[stat]
    sred = {'max': 's_max_i32', 'min': 's_min_i32', 'avg': 's_add_u32'}[stat]
    init = {'max': '0x80000000', 'min': '0x7fffffff', 'avg': '0'}[stat]
    a(f"""
s_cmp_ge_u32 s2, 1
s_cbranch_scc1 L_amp_end
s_load_dwordx2 s[16:17], s[0:1], 48
s_waitcnt lgkmcnt(0)
s_add_u32 s4, s16, {STAMP_OFF}
s_addc_u32 s5, s17, 0
s_mov_b32 s6, {256*16*64}
s_mov_b32 s7, 0x20000
s_load_dword s20, s[4:5], 0
v_and_b32 v1, {wmask}, v0
v_add_u32 v1, {woff}, v1
v_lshrrev_b32 v2, 3, v0
v_lshlrev_b32 v1, 6, v1
v_lshl_add_u32 v1, v2, 10, v1
v_lshlrev_b32 v3, 10, v2
v_mov_b32 v4, 0x7fffffff
v_mov_b32 v5, {init}
s_mov_b32 s8, 0
s_waitcnt lgkmcnt(0)
L_amp_loop:
buffer_load_dword v6, v3, s[4:7], s8 offen
buffer_load_dword v7, v1, s[4:7], s8 offen offset:{4*idx}
s_add_u32 s8, s8, 8192
s_waitcnt vmcnt(0)
v_subrev_u32 v6, s20, v6
v_subrev_u32 v7, s20, v7
v_min_i32 v4, v4, v6
{red} v5, v5, v7
s_cmp_lt_u32 s8, {256*1024}
s_cbranch_scc1 L_amp_loop
s_mov_b32 s9, 0x7fffffff
s_mov_b32 s10, {init}
s_mov_b32 s11, 0
L_amp_red:
s_nop 4
v_readlane_b32 s12, v4, s11
v_readlane_b32 s13, v5, s11
s_nop 4
s_min_i32 s9, s9, s12
{sred} s10, s10, s13
s_add_u32 s11, s11, 1
s_cmp_lt_u32 s11, 64
s_cbranch_scc1 L_amp_red
{'s_ashr_i32 s10, s10, 11' if stat == 'avg' else ''}
s_sub_u32 s10, s10, s9
s_min_u32 s10, s10, 8000
s_mul_i32 s10, s10, {K}
s_memrealtime s[12:13]
s_waitcnt lgkmcnt(0)
L_amp_spin:
s_memrealtime s[14:15]
s_waitcnt lgkmcnt(0)
s_sub_u32 s14, s14, s12
s_cmp_lt_u32 s14, s10
s_cbranch_scc1 L_amp_spin
L_amp_end:
s_endpgm
""")

def make(G, idx, K=40, stat='avg', woff=2, wmask=7, **kw):
    a, k = G.gen(stamps=True, name='main_kernel', **kw)
    amp_kernel(a, 'amp_kernel', idx, K, stat, woff, wmask)
    hdr = HEADER + f"; @launch kernel={k} grid=(256,1,1) block=(640,1,1) lds={G.LDS_BYTES}\n; @launch kernel=amp_kernel grid=(1,1,1) block=(64,1,1) lds=0\n"
    return hdr + '.amdgcn_target "amdgcn-amd-amdhsa--gfx950"\n.text\n' + a.text() + descriptor(k, G.NVGPR, sgpr=80) + descriptor('amp_kernel', 16)

if __name__ == '__main__':
    kw = dict(preread='nt', spread=7, NK=22, NV=22)
    open('a3_zero.s', 'w').write(make(gen3, 13, K=0, **kw))
    for i in (1, 2, 3, 5, 6, 7, 8, 10, 11, 13):
        open(f'a3_avg{i}.s', 'w').write(make(gen3, i, **kw))
    open(f'a3_max13.s', 'w').write(make(gen3, 13, stat='max', **kw))
    open(f'a3_max7.s', 'w').write(make(gen3, 7, stat='max', **kw))
```

```python
import sys
from asmlib import *
from gen2 import NAME, HEADER, LOG2E, CMUL, EPS, STAMP_OFF

sW, sH, sJ = 3, 18, 19
SK, SOUT, SOH, SWS, SOM = 20, 32, 36, 40, 44
sBase, sT, sU, sOff, sCnt, sMode, sXcc = 48, 49, 50, 52, 53, 54, 55
sTag = 56
sTmp64 = 58
sStamp = 60
sStamp0 = 62
SST = 64
sProg, sNeed, sPo = 68, 69, 70
sEv = 72
WS_HEAD = 8192
W_KV, W_R, W_R2, W_E = 0, 4096, 4096 + 256, 4096 + 512
L_FL = 0
L_Z = 384
L_KQ = 512
L_V, L_OM, L_PHI, L_KVB = L_KQ + 65536, L_KQ + 131072, L_KQ + 135168, L_KQ + 139264
F_CNT, F_MODE, F_STAGE, F_PROG = 0, 1, 2, 3
LDS_BYTES = L_KVB + 4096
vL, vN, vG, vT0, vT1, vT2, vS = 1, 2, 3, 4, 5, 6, 7
vFA = 8
vFL = 10
vF = 16
vPub, vM0, vM1, vTR0, vTR1, vPA = 20, 21, 22, 23, 24, 25
vPhi, vZ = 26, 28
vB = 30
TA, TB = 34, 38
vP, vGm, vD2, vRcp = 42, 46, 50, 54
vOA, vZA = 58, 59
OM, FR, KVB, PK = 64, 96, 128, 160
NVGPR = 168
SPIN = 1 << 16
LSPIN = 1 << 20

def gen(N=20, stamps=False, lf='nt', sf='nt', gf='sc1', force_slow=False, name=None, fill='nt', fillwide=True,
        spread=7, rdyat=12, zat=32, h1at=None, prefetch='helper', pfmask=15, vsplit=28, h2wait=True, bar_at=None, touch=True, NQ=None, fillmode='start', zat2=None, dual=False, h2mode=1, lateload=False, stag=None, gateA=None, gateB=None, gbit=3, onex8=False, st_first=False, compact=False, tlb=None):
    assert N % 4 == 0
    a = Asm()
    k = name or NAME + '_kernel'
    uid = [0]
    def stamp(i):
        if stamps:
            a(f"s_memrealtime s[{sStamp}:{sStamp+1}]\ns_waitcnt lgkmcnt(0)\nv_writelane_b32 v{vS}, s{sStamp}, {i}")
    def stamp_val(i, s):
        if stamps:
            a(f"v_writelane_b32 v{vS}, s{s}, {i}")
    def wait_flags(conds):
        uid[0] += 1
        lab = f"L_wf{uid[0]}"
        a(f"s_mov_b32 s{sCnt}, 0\n{lab}:")
        if len(conds) == 1:
            w = conds[0][0]
            a(f"ds_read_b32 v{vFL+w}, v{vFA} offset:{4*w}")
        else:
            a(f"ds_read_b128 {vr(vFL,4)}, v{vFA}")
        a(f"s_add_u32 s{sCnt}, s{sCnt}, 1\ns_bitcmp1_b32 s{sCnt}, 23\ns_cbranch_scc1 {lab}_x\ns_waitcnt lgkmcnt(0)")
        for w, m in conds:
            a(f"v_cmp_gt_i32 vcc, {m}, v{vFL+w}\ns_cbranch_vccnz {lab}")
        a(f"{lab}_x:")
    def set_flag(word, vreg, op='ds_write_b32'):
        a(f"s_mov_b64 exec, 1\n{op} v{vFA}, v{vreg} offset:{4*word}\ns_mov_b64 exec, -1")
    def store2(text):
        uid[0] += 1
        lab = f"L_st{uid[0]}"
        lines = text.strip().split('\n')
        a(f"s_cmp_eq_u32 s{sMode}, 1\ns_cbranch_scc0 {lab}_s")
        for ln in lines: a(ln)
        a(f"s_branch {lab}_d\n{lab}_s:")
        for ln in lines: a(ln + ' sc1')
        a(f"{lab}_d:")
    a(f""".globl {k}
.p2align 8
.type {k},@function
{k}:""")
    if stamps:
        a(f"s_memrealtime s[{sStamp0}:{sStamp0+1}]\nv_mov_b32 v{vS}, 0")
    lA, lP = 16, 20
    lag = (N - 1) // 4
    if bar_at is None:
        bar_at = lag + 1
    def code_prefetch(dst):
        a(f"""; pull this kernel's code into L2 (one lane per 128-byte line)
s_and_b32 s{sT}, s{sJ}, {pfmask}
s_cbranch_scc1 L_nopf
s_getpc_b64 s[{sTmp64}:{sTmp64+1}]
L_pc:
s_sub_u32 s{sTmp64}, s{sTmp64}, L_pc-{k}
s_subb_u32 s{sTmp64+1}, s{sTmp64+1}, 0
v_lshlrev_b32 v{vT2}, 7, v{vL}
v_min_u32 v{vT0}, L_end-{k}, v{vT2}
global_load_dword v{dst}, v{vT0}, s[{sTmp64}:{sTmp64+1}]
L_nopf:""")
    if onex8:
        a(f"s_load_dwordx8 s[4:11], s[0:1], 0")
    elif not lateload:
        a(f"s_load_dwordx2 s[{SK}:{SK+1}], s[0:1], 8")
    else:
        a(f"""v_cmp_gt_u32 vcc, 64, v0
s_cbranch_vccz L_nold
s_load_dwordx2 s[{SK}:{SK+1}], s[0:1], 8
s_load_dwordx8 s[4:11], s[0:1], 0
L_nold:""")
    a(f"""
v_readfirstlane_b32 s{sW}, v0
s_cmpk_ge_u32 s2, 256
s_cbranch_scc1 L_end
s_and_b32 s{sH}, s2, 15
s_lshr_b32 s{sJ}, s2, 4
s_lshl_b32 s{sT}, s{sH}, 20
s_lshl_b32 s{sU}, s{sJ}, 16
s_or_b32 s{sBase}, s{sT}, s{sU}
v_and_b32 v{vL}, 63, v0
v_mov_b32 v{vFA}, 0
v_lshlrev_b32 v{lP}, 2, v{vL}
s_cmp_eq_u32 s{sW}, 0
s_cbranch_scc1 L_loader
ds_write_b32 v{lP}, v{vFA}          ; flags start at zero""")
    if prefetch == 'pre':
        a(f"""s_and_b32 s{sT}, s{sJ}, {pfmask}
s_add_u32 s{sT}, s{sT}, s{sW}
s_cmpk_lg_u32 s{sT}, 128
s_cbranch_scc1 L_nopf
s_getpc_b64 s[{sTmp64}:{sTmp64+1}]
L_pc:
v_lshlrev_b32 v{vT2}, 7, v{vL}
v_min_u32 v{vT0}, L_end-L_pc, v{vT2}
global_load_dword v{PK}, v{vT0}, s[{sTmp64}:{sTmp64+1}]
L_nopf:""")
    a(f"""s_waitcnt lgkmcnt(0)
s_barrier                     ; B0
s_branch L_notloader
L_loader:
{'' if lateload or onex8 else 's_load_dwordx8 s[4:11], s[0:1], 0'}
v_lshrrev_b32 v{vT0}, 4, v0
v_and_b32 v{vT0}, 2, v{vT0}
v_xor_b32 v{vT0}, v{vT0}, v0
v_lshlrev_b32 v{lA}, 4, v{vT0}
s_mov_b32 s{SK+2}, 0x1000000
s_mov_b32 s{SK+3}, 0x20000
v_xor_b32 v{lA+1}, 64, v{lA}
v_xor_b32 v{lA+2}, 0x80, v{lA}
v_xor_b32 v{lA+3}, 0xc0, v{lA}
s_movk_i32 m0, {L_KQ}
s_mov_b32 s{sOff}, s{sBase}
s_movk_i32 s{sProg}, {-lag}
s_mov_b32 s{sEv}, {(1 << bar_at) | (1 << 16)}
s_mov_b32 s{sEv+1}, 0x10001
s_waitcnt lgkmcnt(0)""")
    if onex8:
        a(f"s_mov_b32 s{SK}, s6\ns_mov_b32 s{SK+1}, s7")
    if st_first:
        a(f"s_memrealtime s[{sTag}:{sTag+1}]")
    if stamps:
        a(f"v_writelane_b32 v{vS}, s{sStamp0}, 0")
    a(f"""L_ld:
s_waitcnt vmcnt({N-1})
buffer_load_dwordx4 v{lA}, {sr(SK,4)}, s{sOff} offen {lf} lds
s_waitcnt vmcnt({N-1})
buffer_load_dwordx4 v{lA+1}, {sr(SK,4)}, s{sOff} offen offset:1024 {lf} lds
s_waitcnt vmcnt({N-1})
buffer_load_dwordx4 v{lA+2}, {sr(SK,4)}, s{sOff} offen offset:2048 {lf} lds
v_mov_b32 v{vFL}, s{sProg}
s_cmp_lt_i32 s{sProg}, 1
s_waitcnt vmcnt({N-1})
s_cbranch_scc1 L_ld_noprog
ds_write_b32 v{lP}, v{vFL} offset:{4*F_PROG}
L_ld_noprog:
buffer_load_dwordx4 v{lA+3}, {sr(SK,4)}, s{sOff} offen offset:3072 {lf} lds
s_add_u32 s{sT}, s{sProg}, {lag + 1}
s_add_u32 s{sOff}, s{sOff}, 4096
s_add_u32 m0, m0, 4096
s_add_u32 s{sProg}, s{sProg}, 1
s_bitcmp1_b64 s[{sEv}:{sEv+1}], s{sT}
s_cbranch_scc0 L_ld
s_cmp_eq_u32 s{sT}, 16
s_cbranch_scc1 L_ld_toV
s_cmp_eq_u32 s{sT}, 32
s_cbranch_scc1 L_ld_toQ
s_cmp_eq_u32 s{sT}, 48
s_cbranch_scc1 L_ld_drain
s_setprio 2
s_mov_b32 s{SOM}, s10
s_mov_b32 s{SOM+1}, s11
s_mov_b32 s{SOM+2}, 4096
s_mov_b32 s{SOM+3}, 0x20000
s_mov_b32 s{sU}, m0
s_mov_b32 m0, {L_OM}
s_nop 0""")
    for t in range(4):
        a(f"buffer_load_dwordx4 v{lA+t}, {sr(SOM,4)}, 0 offen offset:{t*1024} lds")
    if tlb == 'vec':
        a(f"""; touch this workgroup's V and Q pages so that their translations are ready when the streams get there
v_mov_b32 v{vT1}, s{sBase}
s_mov_b64 exec, 1
global_load_dword v{vT2}, v{vT1}, s[8:9]
global_load_dword v{vT0}, v{vT1}, s[4:5]
s_mov_b64 exec, -1""")
    elif tlb == 'sca':
        a(f"""s_load_dword s{sTag}, s[8:9], s{sBase}
s_load_dword s{sTag+1}, s[4:5], s{sBase}""")
    a(f"""s_mov_b32 m0, s{sU}
s_barrier""")
    stamp(1)
    if st_first:
        a(f"v_writelane_b32 v{vS}, s{sTag}, 1")
    a(f"""s_branch L_ld
L_ld_toV:""")
    stamp(2)
    a(f"""s_mov_b32 s{SK}, s8
s_mov_b32 s{SK+1}, s9
s_mov_b32 s{sOff}, s{sBase}
s_branch L_ld
L_ld_toQ:""")
    stamp(3)
    a(f"""s_mov_b32 s{SK}, s4
s_mov_b32 s{SK+1}, s5
s_mov_b32 s{sOff}, s{sBase}
s_movk_i32 m0, {L_KQ}""")
    wait_flags([(F_CNT, 8)])
    lagq = lag
    def qloop(tag, NQ, first=32, last=48):
        lagq = (NQ - 1) // 4
        a(f"""s_movk_i32 s{sProg}, {first - lagq}
L_ldq{tag}:
s_waitcnt vmcnt({NQ-1})
buffer_load_dwordx4 v{lA}, {sr(SK,4)}, s{sOff} offen {lf} lds
s_waitcnt vmcnt({NQ-1})
buffer_load_dwordx4 v{lA+1}, {sr(SK,4)}, s{sOff} offen offset:1024 {lf} lds
s_waitcnt vmcnt({NQ-1})
buffer_load_dwordx4 v{lA+2}, {sr(SK,4)}, s{sOff} offen offset:2048 {lf} lds
v_mov_b32 v{vFL}, s{sProg}
s_waitcnt vmcnt({NQ-1})
ds_max_i32 v{lP}, v{vFL} offset:{4*F_PROG}
buffer_load_dwordx4 v{lA+3}, {sr(SK,4)}, s{sOff} offen offset:3072 {lf} lds
s_add_u32 s{sOff}, s{sOff}, 4096
s_add_u32 m0, m0, 4096
s_add_u32 s{sProg}, s{sProg}, 1
s_cmp_lt_i32 s{sProg}, {last - lagq}
s_cbranch_scc1 L_ldq{tag}""")
        return lagq
    def drain_to(upto, lg):
        for done in range(upto - lg, upto + 1):
            a(f"v_mov_b32 v{vFL}, {done}\ns_waitcnt vmcnt({(upto-done)*4})\nds_max_i32 v{lP}, v{vFL} offset:{4*F_PROG}")
    if stag:
        NA, NB, pre, rel, preB = stag
        a(f"s_bitcmp1_b32 s2, {gbit}\ns_cbranch_scc1 L_qB")
        if pre:
            qloop('A0', N, 32, 32 + pre)
        drain_to(32 + pre, lag)
        wait_flags([(F_STAGE, rel)])
        qloop('A', NA, 32 + pre)
        a("s_branch L_ld_drain\nL_qB:")
        if preB:
            qloop('B0', N, 32, 32 + preB)
        qloop('B', NB, 32 + preB)
        lagq = (max(NA, NB) - 1) // 4
    elif NQ is None or NQ == N:
        a("s_branch L_ld")
    else:
        lagq = qloop('', NQ)
    a("L_ld_drain:")
    stamp(4)
    for done in range(48 - lagq + ((48 - lagq) & 1), 49, 2):
        a(f"v_mov_b32 v{vFL}, {done}\ns_waitcnt vmcnt({(48-done)*4})\nds_max_i32 v{lP}, v{vFL} offset:{4*F_PROG}")
    stamp(5)
    a("s_branch L_fin" if stamps else "s_endpgm")
    a(f"""L_notloader:
s_load_dwordx2 s[12:13], s[0:1], 32
s_load_dwordx2 s[16:17], s[0:1], 48
s_lshr_b32 s{sW}, s{sW}, 6
s_cmp_eq_u32 s{sW}, 1
s_cbranch_scc1 L_helper""")
    if prefetch == 'first':
        a(f"s_cmp_lg_u32 s{sW}, 2\ns_cbranch_scc1 L_nopf")
        code_prefetch(PK)
    a(f"""
v_and_b32 v{vN}, 15, v0
v_bfe_u32 v{vG}, v0, 4, 2
s_mov_b32 s{SOUT+2}, 65536
s_mov_b32 s{SOUT+3}, 0x20000
s_sub_u32 s{sW}, s{sW}, 2
s_lshl_b32 s{sNeed}, s{sW}, 1
s_add_u32 s{sNeed}, s{sNeed}, 2
v_and_b32 v{vT1}, 7, v{vN}
v_lshlrev_b32 v{vT0}, 1, v{vT1}
v_xor_b32 v{vT0}, v{vG}, v{vT0}
v_lshlrev_b32 v{vT0}, 4, v{vT0}
v_lshl_add_u32 v{vT2}, v{vN}, 9, v{vT0}
s_lshl_b32 s{sT}, s{sW}, 13
v_add_u32 v{vT2}, {L_KQ}, v{vT2}
v_add_u32 v{vF}, s{sT}, v{vT2}
v_xor_b32 v{vF+1}, 64, v{vF}
v_xor_b32 v{vF+2}, 0x80, v{vF}
v_xor_b32 v{vF+3}, 0xc0, v{vF}
v_lshl_add_u32 v{vT0}, v{vT1}, 9, v{vT0}
v_add_u32 v{vB}, {L_OM}, v{vT0}
v_xor_b32 v{vB+1}, 64, v{vB}
v_xor_b32 v{vB+2}, 0x80, v{vB}
v_xor_b32 v{vB+3}, 0xc0, v{vB}
v_lshlrev_b32 v{vT0}, 11, v{vG}
v_lshl_add_u32 v{vT0}, v{vN}, 4, v{vT0}
v_add_u32 v{vOA}, s{sT}, v{vT0}
v_lshlrev_b32 v{vT0}, 2, v{vG}
v_sub_u32 v{vT0}, v{vN}, v{vT0}
v_mov_b32 v{vT1}, 0xffff
v_mov_b32 v{vT2}, 0xffff0000
v_cmp_eq_u32 vcc, 0, v{vT0}
v_cmp_eq_u32 s[{sTmp64}:{sTmp64+1}], 1, v{vT0}
v_cndmask_b32 v{vM0}, 0, v{vT1}, vcc
v_cmp_eq_u32 vcc, 2, v{vT0}
v_cndmask_b32 v{vM0}, v{vM0}, v{vT2}, s[{sTmp64}:{sTmp64+1}]
v_cmp_eq_u32 s[{sTmp64}:{sTmp64+1}], 3, v{vT0}
v_cndmask_b32 v{vM1}, 0, v{vT1}, vcc
v_and_b32 v{TA}, 0x3e803e80, v{vM0}
v_cndmask_b32 v{vM1}, v{vM1}, v{vT2}, s[{sTmp64}:{sTmp64+1}]
v_and_b32 v{TA+1}, 0x3e803e80, v{vM1}
v_lshrrev_b32 v{vT0}, 2, v{vL}
v_and_b32 v{vT1}, 7, v{vT0}
s_lshl_b32 s{sT}, s{sW}, 1
v_xor_b32 v{vT1}, s{sT}, v{vT1}
v_lshlrev_b32 v{vT1}, 5, v{vT1}
v_lshl_add_u32 v{vTR0}, v{vT0}, 9, v{vT1}
v_and_b32 v{vT1}, 3, v{vL}
v_lshl_add_u32 v{vTR0}, v{vT1}, 3, v{vTR0}
v_add_u32 v{vTR0}, {L_V}, v{vTR0}
v_xor_b32 v{vTR1}, 32, v{vTR0}
v_lshlrev_b32 v{vT0}, 4, v{vL}
v_add_u32 v{vPA}, {L_PHI}, v{vT0}
s_and_b32 s{sU}, s{sJ}, {spread}
s_lshl_b32 s{sU}, s{sU}, 3
s_add_u32 s{sU}, s{sU}, s{sW}
s_lshl_b32 s{sU}, s{sU}, 10
v_add_u32 v{vPub}, s{sU}, v{vT0}
v_and_b32 v{vZA}, 1, v{vG}
v_lshlrev_b32 v{vZA}, 3, v{vZA}
v_add_u32 v{vZA}, {L_Z}, v{vZA}
v_cmp_gt_u32 s[{sTmp64}:{sTmp64+1}], 32, v{vL}
s_lshr_b32 s{sT}, s{sW}, 1
s_lshl_b32 s{sT}, s{sT}, 10
s_and_b32 s{sU}, s{sW}, 1
s_lshl_b32 s{sU}, s{sU}, 3
s_add_u32 s{sT}, s{sT}, s{sU}
v_add_u32 v{vT2}, s{sT}, v{vPA}
s_waitcnt lgkmcnt(0)
s_add_u32 s{SOUT}, s12, s{sBase}
s_addc_u32 s{SOUT+1}, s13, 0""")
    if stamps:
        a(f"v_writelane_b32 v{vS}, s{sStamp0}, 0")
    stamp(1)
    wait_flags([(F_PROG, bar_at + 1)])
    for u in range(8):
        a(f"ds_read_b128 {vr(OM+4*u,4)}, v{vB+(u&3)} offset:{256*(u>>2)}")
    a(f"""; B-fragment read addresses for the output phase
v_and_b32 v{vT0}, 1, v{vG}
v_lshlrev_b32 v{vT0}, 11, v{vT0}
v_lshl_add_u32 v{vT0}, v{vN}, 6, v{vT0}
v_lshrrev_b32 v{vT1}, 2, v{vN}
v_lshl_add_u32 v{vT0}, v{vT1}, 4, v{vT0}
v_add_u32 v{vB}, {L_KVB}, v{vT0}
v_xor_b32 v{vB+1}, 16, v{vB}
v_xor_b32 v{vB+2}, 32, v{vB}
v_xor_b32 v{vB+3}, 48, v{vB}
v_mov_b32 v{vT1}, 1""")
    wait_flags([(F_PROG, f"s{sNeed}")])
    stamp(2)
    def phi(isq):
        for u in range(8):
            a(f"ds_read_b128 {vr(FR+4*u,4)}, v{vF+(u&3)} offset:{256*(u>>2)}")
        gd, cc = (TB+2, TA+2) if isq else (TA+2, TB+2)
        a(f"v_mov_b32 v{cc}, 0xbd00bd00\nv_mov_b32 v{cc+1}, 0xbd00bd00")
        for u in range(8):
            a(f"s_waitcnt lgkmcnt({7-u})")
            c1 = '0' if u == 0 else vr(vP, 4)
            c2 = '0' if u == 0 else vr(vGm, 4)
            a(f"v_mfma_f32_16x16x32_bf16 {vr(vGm,4)}, {vr(FR+4*u,4)}, {vr(FR+4*u,4)}, {c2}")
            if isq:
                a(f"v_mfma_f32_16x16x32_bf16 {vr(vP,4)}, {vr(OM+4*u,4)}, {vr(FR+4*u,4)}, {c1}")
            else:
                a(f"v_mfma_f32_16x16x32_bf16 {vr(vP,4)}, {vr(FR+4*u,4)}, {vr(OM+4*u,4)}, {c1}")
        a(f"""
v_cvt_pk_bf16_f32 v{gd}, v{vGm}, v{vGm+1}
v_cvt_pk_bf16_f32 v{gd+1}, v{vGm+2}, v{vGm+3}
v_and_b32 v{gd}, v{gd}, v{vM0}
v_and_b32 v{gd+1}, v{gd+1}, v{vM1}
v_cvt_pk_bf16_f32 v{TB}, v{vP}, v{vP+1}
v_cvt_pk_bf16_f32 v{TB+1}, v{vP+2}, v{vP+3}
v_mfma_f32_16x16x32_bf16 {vr(vD2,4)}, {vr(TA,4)}, {vr(TB,4)}, 0
""")
        for op in (lambda r: f"v_cvt_pk_bf16_f32 v{r}, 0, v{r}",
                   lambda r: f"v_mul_f32 v{r}, {LOG2E}, v{r}",
                   lambda r: f"v_exp_f32 v{r}, v{r}",
                   lambda r: f"v_cvt_pk_bf16_f32 v{r}, 0, v{r}",
                   lambda r: f"v_mul_f32 v{r}, {CMUL}, v{r}",
                   lambda r: f"v_cvt_pk_bf16_f32 v{r}, 0, v{r}",
                   lambda r: f"v_add_f32 v{r}, {EPS}, v{r}"):
            for r in range(4):
                a(op(vD2 + r))
        a(f"""
v_cvt_pk_bf16_f32 v{vPhi}, v{vD2}, v{vD2+1}
v_cvt_pk_bf16_f32 v{vPhi+1}, v{vD2+2}, v{vD2+3}
""")
    phi(False)
    a(f"ds_write_b64 v{vT2}, {vr(vPhi,2)}")
    set_flag(F_CNT, vT1, 'ds_add_u32')
    a(f"s_add_u32 s{sNeed}, s{sNeed}, 32")
    stamp(3)
    AF, BF, D0, D1 = KVB, FR, vP, vGm
    def v_reads(s):
        for u in range(2):
            for hh in range(2):
                a(f"ds_read_b64_tr_b16 {vr(BF+8*s+4*u+2*hh,2)}, v{vTR0+u} offset:{(32*s+16*hh)*512}")
    def v_mf(s):
        c = lambda D: '0' if s == 0 else vr(D, 4)
        a(f"""v_mfma_f32_16x16x32_bf16 {vr(D0,4)}, {vr(AF+4*s,4)}, {vr(BF+8*s,4)}, {c(D0)}
v_mfma_f32_16x16x32_bf16 {vr(D1,4)}, {vr(AF+4*s,4)}, {vr(BF+8*s+4,4)}, {c(D1)}""")
    wait_flags([(F_PROG, vsplit), (F_CNT, 8), (F_MODE, 1)])
    stamp(4)
    a(f"v_readfirstlane_b32 s{sMode}, v{vFL+F_MODE}")
    for s in range(4):
        a(f"ds_read_b128 {vr(AF+4*s,4)}, v{vPA} offset:{1024*s}")
    v_reads(0); v_reads(1)
    a("s_waitcnt lgkmcnt(4)"); v_mf(0)
    v_reads(2)
    a("s_waitcnt lgkmcnt(4)"); v_mf(1)
    a("s_waitcnt lgkmcnt(0)"); v_mf(2)
    wait_flags([(F_PROG, 32)])
    stamp(5)
    v_reads(3)
    a(f"s_waitcnt lgkmcnt(2)\nv_mfma_f32_16x16x32_bf16 {vr(D0,4)}, {vr(AF+12,4)}, {vr(BF+24,4)}, {vr(D0,4)}")
    a(f"s_waitcnt lgkmcnt(0)\nv_mfma_f32_16x16x32_bf16 {vr(D1,4)}, {vr(AF+12,4)}, {vr(BF+28,4)}, {vr(D1,4)}")
    for r in range(4):
        a(f"v_cndmask_b32 v{vD2+r}, v{D1+r}, v{D0+r}, s[{sTmp64}:{sTmp64+1}]")
    for r in range(4):
        a(f"v_min_u32 v{vD2+r}, -2, v{vD2+r}")
    store2(f"buffer_store_dwordx4 {vr(vD2,4)}, v{vPub}, {sr(SOUT,4)}, 0 offen")
    if h1at is not None:
        set_flag(F_CNT, vT1, 'ds_add_u32')
    stamp(6)
    wait_flags([(F_PROG, f"s{sNeed}")])
    stamp(7)
    phi(True)
    a(f"""v_cndmask_b32 v{vPhi}, 0, v{vPhi}, s[{sTmp64}:{sTmp64+1}]
v_cndmask_b32 v{vPhi+1}, 0, v{vPhi+1}, s[{sTmp64}:{sTmp64+1}]""")
    stamp(8)
    wait_flags([(F_STAGE, 1)])
    a(f"""ds_read_b64 {vr(vZ,2)}, v{vZA}
s_waitcnt lgkmcnt(0)
v_mfma_f32_16x16x16_bf16 {vr(vD2,4)}, {vr(vPhi,2)}, {vr(vZ,2)}, 0""")
    for op in (lambda r: f"v_cvt_pk_bf16_f32 v{vRcp+r}, 0, v{vD2+r}",
               lambda r: f"v_add_f32 v{vRcp+r}, {EPS}, v{vRcp+r}",
               lambda r: f"v_cvt_pk_bf16_f32 v{vRcp+r}, 0, v{vRcp+r}",
               lambda r: f"v_rcp_f32 v{vRcp+r}, v{vRcp+r}"):
        for r in range(4):
            a(op(r))
    stamp(9)
    if gateA or gateB:
        a(f"s_bitcmp1_b32 s2, {gbit}\ns_cselect_b32 s{sNeed}, {gateB or 0}, {gateA or 0}")
        wait_flags([(F_STAGE, 3), (F_PROG, f"s{sNeed}")])
    else:
        wait_flags([(F_STAGE, 3)])
    stamp(10)
    for i in range(8):
        a(f"ds_read_b128 {vr(KVB+4*i,4)}, v{vB+(i&3)} offset:{1024*(i>>2)}")
    ACC = OM
    def out_mf(hf, c):
        i = hf*4 + (c >> 1)
        if c % 2 == 0:
            a(f"s_waitcnt lgkmcnt({7-i})")
        a(f"v_mfma_f32_16x16x16_bf16 {vr(ACC+32*hf+4*c,4)}, {vr(vPhi,2)}, {vr(KVB+4*i+2*(c&1),2)}, 0")
    def scale(x, r):
        a(f"v_cvt_pk_bf16_f32 v{x}, 0, v{x}")
        a(f"v_cvt_pk_bf16_f32 v{x+1}, 0, v{x+1}")
        a(f"v_pk_mul_f32 {vr(x,2)}, {vr(x,2)}, {vr(vRcp+r,2)}")
    for c in range(8):
        out_mf(0, c)
        if c >= 3:
            scale(ACC + 4*(c-3), 0)
    for c in range(5, 8):
        out_mf(1, c - 5)
        scale(ACC + 4*c, 0)
    cnt = 0
    for hf in range(2):
        for r in range(4):
            regs = [ACC+32*hf+4*c+r for c in range(8)]
            if r % 2 == 0 and (hf, r) != (0, 0):
                for ci, x in enumerate(regs):
                    scale(x, r)
                    if (hf, r) == (0, 2) and ci < 5:
                        out_mf(1, 3 + ci)
            pkr = PK + 4*(cnt % 2); cnt += 1
            for c2 in range(4):
                a(f"v_cvt_pk_bf16_f32 v{pkr+c2}, v{regs[2*c2]}, v{regs[2*c2+1]}")
            a(f"buffer_store_dwordx4 {vr(pkr,4)}, v{vOA}, {sr(SOUT,4)}, 0 offen offset:{r*512+hf*256} {sf}")
            if cnt == 1:
                stamp(11)
    stamp(12)
    if stamps:
        a("s_waitcnt vmcnt(0)")
        stamp(13)
        a(f"s_add_u32 s{sW}, s{sW}, 2\ns_branch L_fin")
    else:
        a("s_endpgm")
    hA, hC, hZ, hR, hK = 16, 20, 21, 22, 23
    hONE, hAF, hD, hG = 24, 28, 44, 64
    hX = 48
    a(f"""L_helper:
s_setprio 3""")
    if prefetch == 'helper':
        code_prefetch(hG + 31)
    a(f"""s_mul_i32 s{sT}, s{sH}, {WS_HEAD}
s_waitcnt lgkmcnt(0)
s_add_u32 s{SWS}, s16, s{sT}
s_addc_u32 s{SWS+1}, s17, 0
s_load_dwordx2 s[{sTag}:{sTag+1}], s[{SWS}:{SWS+1}], {W_E}""")
    if stamps:
        a(f"v_writelane_b32 v{vS}, s{sStamp0}, 0")
    a(f"""s_mov_b32 s{SWS+2}, {WS_HEAD}
s_mov_b32 s{SWS+3}, 0x20000
s_add_u32 s{SOUT}, s12, s{sBase}
s_addc_u32 s{SOUT+1}, s13, 0
s_mov_b32 s{SOUT+2}, 65536
s_mov_b32 s{SOUT+3}, 0x20000
s_lshl_b32 s{sT}, s{sH}, 20
s_add_u32 s{SOH}, s12, s{sT}
s_addc_u32 s{SOH+1}, s13, 0
s_mov_b32 s{SOH+2}, 0x100000
s_mov_b32 s{SOH+3}, 0x20000
s_getreg_b32 s{sXcc}, hwreg(HW_REG_XCC_ID, 0, 4)
v_and_b32 v{vN}, 15, v0
v_bfe_u32 v{vG}, v0, 4, 2
v_mov_b32 v{hONE}, -1
v_mov_b32 v{hONE+1}, -1
v_mov_b32 v{hONE+2}, -1
v_mov_b32 v{hONE+3}, -1
v_lshlrev_b32 v{hC}, 4, v{vL}
s_and_b32 s{sPo}, s{sJ}, {spread}
s_add_u32 s{sU}, s{sPo}, 1
s_and_b32 s{sU}, s{sU}, 7
s_lshl_b32 s{sU}, s{sU}, 13
s_lshl_b32 s{sPo}, s{sPo}, 13
v_add_u32 v{hX}, 4096, v{hC}
v_and_b32 v{vT0}, 0x2f, v{vL}
v_cmp_eq_u32 vcc, 0, v{vT0}
v_lshlrev_b32 v{vT0}, 4, v{vG}
v_add_u32 v{vT0}, s{sU}, v{vT0}
v_mov_b32 v{vT1}, 0x7fffff00
v_cndmask_b32 v{hZ}, v{vT1}, v{vT0}, vcc
v_lshrrev_b32 v{vT0}, 3, v{vN}
s_lshl_b32 s{sT}, s{sJ}, 1
v_add_u32 v{vT0}, s{sT}, v{vT0}
v_bfe_u32 v{vT2}, v{vT0}, 2, 2
v_lshlrev_b32 v{hK}, 6, v{vT0}
v_bfe_u32 v{vT0}, v{vN}, 1, 2
v_xor_b32 v{vT0}, v{vT0}, v{vT2}
v_lshl_add_u32 v{hK}, v{vT0}, 4, v{hK}
v_and_b32 v{vT0}, 1, v{vN}
v_lshl_add_u32 v{hK}, v{vT0}, 3, v{hK}
v_lshl_add_u32 v{hK}, v{vG}, 11, v{hK}
v_cmp_gt_u32 vcc, 32, v{vL}
v_lshlrev_b32 v{hR}, 3, v{vN}
v_lshlrev_b32 v{vT2}, 7, v{vL}
v_cndmask_b32 v{hK}, v{vT1}, v{hK}, vcc
""")
    def big_fill():
        if fillwide:
            for t in range(8):
                a(f"buffer_load_dwordx4 {vr(hG+4*(t&3),4)}, v{hC if t < 4 else hF}, {sr(SOUT,4)}, s{sPo} offen offset:{(t&3)*1024} {fill}")
        else:
            a(f"buffer_load_dword v{hG}, v{hF}, {sr(SOUT,4)}, s{sPo} offen {fill}")
    hF = 56
    a(f"v_mov_b32 v{hF}, v{hX if fillwide else vT2}")
    if fillmode == 'start':
        big_fill()
    a(f"buffer_load_dword v{hAF}, v{hZ}, {sr(SOUT,4)}, 0 offen {fill}")
    a(f"buffer_load_dword v{hAF+1}, v{hK}, {sr(SWS,4)}, 0 offen offset:{W_KV} {fill}")
    def clear(fl):
        for t in range(8):
            a(f"buffer_store_dwordx4 {vr(hONE,4)}, v{hC if t < 4 else hX}, {sr(SOUT,4)}, s{sPo} offen offset:{(t&3)*1024} {fl}")
        a(f"buffer_store_dwordx4 {vr(hONE,4)}, v{hZ}, {sr(SOUT,4)}, 0 offen {fl}")
        a(f"buffer_store_dwordx2 {vr(hONE,2)}, v{hK}, {sr(SWS,4)}, 0 offen offset:{W_KV} {fl}")
    def ready(off):
        a(f"""s_lshl_b32 s{sT}, s{sJ}, 3
s_add_u32 s{sT}, s{sT}, {off}
v_mov_b32 v{vT0}, 0
s_waitcnt vmcnt(0)
s_mov_b64 exec, 1
buffer_store_dwordx2 {vr(hX+4,2)}, v{vT0}, {sr(SWS,4)}, s{sT} offen sc1
s_mov_b64 exec, -1""")
    def wait_ready(off, lab):
        a(f"""s_mov_b32 s{sCnt}, 0
s_mov_b32 s{sT}, {off}
{lab}:
buffer_load_dwordx2 {vr(hG,2)}, v{hR}, {sr(SWS,4)}, s{sT} offen sc1
s_add_u32 s{sCnt}, s{sCnt}, 1
s_waitcnt vmcnt(0)
v_and_b32 v{hG+2}, 15, v{hG}
v_and_b32 v{hG}, -16, v{hG}
v_cmp_ne_u64 vcc, s[{sTag}:{sTag+1}], {vr(hG,2)}
s_bitcmp1_b32 s{sCnt}, 18
s_cbranch_scc1 {lab}_done
s_cbranch_vccnz {lab}
{lab}_done:""")
    clear('')
    a(f"""s_waitcnt lgkmcnt(0)
s_add_u32 s{sTag}, s{sTag}, 16
s_addc_u32 s{sTag+1}, s{sTag+1}, 0
s_and_b32 s{sTag}, s{sTag}, -16
s_or_b32 s{sT}, s{sTag}, s{sXcc}
v_mov_b32 v{hX+4}, s{sT}
v_mov_b32 v{hX+5}, s{sTag+1}""")
    ready(W_R)
    stamp(1)
    a(f"""; hop-1 gather address: hi*(65536+slot) + j*512 + (l&31)*16 ; z gather: p*65536 + slot(p+1) + g2*16
v_lshrrev_b32 v{vT1}, 5, v{vL}
v_mul_u32_u24 v{hA}, {65536 + 8192*(spread & 1)}, v{vT1}
v_and_b32 v{vT1}, 31, v{vL}
v_lshl_add_u32 v{hA}, v{vT1}, 4, v{hA}
s_lshl_b32 s{sT}, s{sJ}, 9
v_add_u32 v{hA}, s{sT}, v{hA}
v_and_b32 v{vT1}, 1, v{vG}
v_lshlrev_b32 v{hA+2}, 3, v{vT1}
v_add_u32 v{hA+2}, {L_Z}, v{hA+2}
v_lshlrev_b32 v{vT1}, 4, v{vT1}
v_lshl_add_u32 v{hA+1}, v{vN}, 16, v{vT1}
v_and_b32 v{vT1}, {spread}, v{vN}
v_add_u32 v{vT1}, 1, v{vT1}
v_and_b32 v{vT1}, 7, v{vT1}
v_lshl_add_u32 v{hA+1}, v{vT1}, 13, v{hA+1}
v_add_u32 v{hA+3}, {L_KVB}, v{hC}""")
    hK2 = 57
    if dual:
        a(f"""; pair mode: gather 1 KiB (slices 2i, 2i+1) from every partial, publish both slices
s_lshr_b32 s{sT}, s{sJ}, 1
s_lshl_b32 s{sU}, s{sT}, 10
v_add_u32 v{hA}, s{sU}, v{hC}
v_lshrrev_b32 v{vT0}, 5, v{vL}
v_lshlrev_b32 v{vT0}, 1, v{vT0}
v_lshrrev_b32 v{vT1}, 3, v{vN}
v_add_u32 v{vT0}, v{vT0}, v{vT1}
s_lshl_b32 s{sU}, s{sT}, 2
v_add_u32 v{vT0}, s{sU}, v{vT0}
v_lshlrev_b32 v{hK2}, 6, v{vT0}
v_and_b32 v{vT1}, 7, v{vN}
v_lshlrev_b32 v{vT1}, 3, v{vT1}
s_and_b32 s{sT}, s{sT}, 3
s_lshl_b32 s{sT}, s{sT}, 4
v_xor_b32 v{vT1}, s{sT}, v{vT1}
v_add_u32 v{hK2}, v{hK2}, v{vT1}
v_and_b32 v{vT1}, 1, v{vG}
v_lshl_add_u32 v{hK2}, v{vT1}, 11, v{hK2}""")
    wait_flags([(F_PROG, rdyat)])
    stamp(2)
    wait_ready(W_R, 'L_rdy1')
    stamp(3)
    stamp_val(13, sCnt)
    a(f"""v_cmp_ne_u32 vcc, s{sXcc}, v{hG+2}
s_mov_b32 s{sMode}, 1""")
    if not force_slow:
        a("s_cbranch_vccz L_mode_done")
    a(f"s_mov_b32 s{sMode}, 2")
    clear('sc1')
    ready(W_R2)
    wait_ready(W_R2, 'L_rdy2')
    a(f"""L_mode_done:
v_mov_b32 v{vT1}, s{sMode}""")
    set_flag(F_MODE, vT1)
    a(f"""v_add_u32 v{vT0}, {L_PHI}, v{hC}
v_mov_b32 v{hONE}, 0x3f803f80
v_mov_b32 v{hONE+1}, 0x3f803f80
v_mov_b32 v{hONE+2}, 0x3f803f80
v_mov_b32 v{hONE+3}, 0x3f803f80""")
    wait_flags([(F_CNT, 8)])
    stamp(4)
    for s in range(4):
        a(f"ds_read_b128 {vr(hAF+4*s,4)}, v{vT0} offset:{1024*s}")
    for s in range(4):
        a(f"s_waitcnt lgkmcnt({3-s})\nv_mfma_f32_16x16x32_bf16 {vr(hD,4)}, {vr(hAF+4*s,4)}, {vr(hONE,4)}, {'0' if s == 0 else vr(hD,4)}")
    for r in range(4):
        a(f"v_min_u32 v{hD+r}, -2, v{hD+r}")
    store2(f"buffer_store_dwordx4 {vr(hD,4)}, v{hZ}, {sr(SOUT,4)}, 0 offen")
    wait_flags([(F_PROG, zat)])
    stamp(5)
    a(f"""s_mov_b32 s{sCnt}, 0
L_zg:
buffer_load_dwordx4 {vr(hX,4)}, v{hA+1}, {sr(SOH,4)}, 0 offen {gf}
s_add_u32 s{sCnt}, s{sCnt}, 1
s_waitcnt vmcnt(0)
v_max3_u32 v{vT0}, v{hX}, v{hX+1}, v{hX+2}
v_max_u32 v{vT0}, v{vT0}, v{hX+3}
v_cmp_eq_u32 vcc, -1, v{vT0}
s_bitcmp1_b32 s{sCnt}, 18
s_cbranch_scc1 L_zg_done
s_cbranch_vccnz L_zg
L_zg_done:""")
    stamp_val(14, sCnt)
    def h1_issue():
        for i in range(16 if dual else 8):
            a(f"s_mov_b32 s{sT}, {i*0x10000 + (i & spread)*8192 if dual else i*0x20000 + ((2*i) & spread)*8192}")
            a(f"buffer_load_dwordx4 {vr(hG+4*i,4)}, v{hA}, {sr(SOH,4)}, s{sT} offen {gf}")
    def z_reduce():
        for sh in (8, 4, 2, 1):
            for r in range(4):
                a(f"v_add_f32_dpp v{hX+r}, v{hX+r}, v{hX+r} row_ror:{sh} row_mask:0xf bank_mask:0xf")
        a(f"""v_cvt_pk_bf16_f32 v{hX}, v{hX}, v{hX+1}
v_cvt_pk_bf16_f32 v{hX+1}, v{hX+2}, v{hX+3}
v_mov_b32 v{vT1}, 1
s_mov_b64 exec, 0x10001
ds_write_b64 v{hA+2}, {vr(hX,2)}
ds_write_b32 v{vFA}, v{vT1} offset:{4*F_STAGE}
s_mov_b64 exec, -1""")
    if h1at is None:
        stamp(6)
        h1_issue()
        z_reduce()
        a(f"s_mov_b32 s{sCnt}, 0\ns_branch L_h1_check\nL_h1:")
    else:
        z_reduce()
        if fillmode == 'afterpub':
            wait_flags([(F_CNT, 16)])
            big_fill()
        if h1at == 0:
            a("s_waitcnt vmcnt(0)")
        else:
            wait_flags([(F_CNT, 16), (F_PROG, h1at)])
        stamp(6)
        a(f"s_mov_b32 s{sCnt}, 0\nL_h1:")
    h1_issue()
    a(f"L_h1_check:\ns_add_u32 s{sCnt}, s{sCnt}, 1")
    n1 = 16 if dual else 8
    for i in range(n1):
        a(f"s_waitcnt vmcnt({n1-1-i})")
        b = hG + 4*i
        if i == 0:
            a(f"v_max3_u32 v{vT0}, v{b}, v{b+1}, v{b+2}\nv_max_u32 v{vT0}, v{vT0}, v{b+3}")
        else:
            a(f"v_max3_u32 v{vT0}, v{vT0}, v{b}, v{b+1}\nv_max3_u32 v{vT0}, v{vT0}, v{b+2}, v{b+3}")
            a(f"v_pk_add_f32 {vr(hG,2)}, {vr(hG,2)}, {vr(b,2)}\nv_pk_add_f32 {vr(hG+2,2)}, {vr(hG+2,2)}, {vr(b+2,2)}")
    a(f"""v_cmp_eq_u32 vcc, -1, v{vT0}""")
    if dual:
        a(f"""v_cvt_pk_bf16_f32 v{hD}, v{hG}, v{hG+1}
v_cvt_pk_bf16_f32 v{hD+1}, v{hG+2}, v{hG+3}
v_min_u32 v{hD}, -2, v{hD}
v_min_u32 v{hD+1}, -2, v{hD+1}""")
    else:
        for r in range(4):
            a(f"v_mov_b32 v{hD+r}, v{hG+r}")
    a(f"""s_bitcmp1_b32 s{sCnt}, 18
s_cbranch_scc1 L_h1_done
s_cbranch_vccnz L_h1
L_h1_done:""")
    if dual:
        store2(f"buffer_store_dwordx2 {vr(hD,2)}, v{hK2}, {sr(SWS,4)}, 0 offen offset:{W_KV}")
    else:
        for r in range(4):
            a(f"v_permlane32_swap_b32 v{hG+r}, v{hD+r}")
        a(f"""v_pk_add_f32 {vr(hG,2)}, {vr(hG,2)}, {vr(hD,2)}
v_pk_add_f32 {vr(hG+2,2)}, {vr(hG+2,2)}, {vr(hD+2,2)}
v_cvt_pk_bf16_f32 v{hG+8}, v{hG}, v{hG+1}
v_cvt_pk_bf16_f32 v{hG+9}, v{hG+2}, v{hG+3}
v_min_u32 v{hG+8}, -2, v{hG+8}
v_min_u32 v{hG+9}, -2, v{hG+9}""")
        store2(f"buffer_store_dwordx2 {vr(hG+8,2)}, v{hK}, {sr(SWS,4)}, 0 offen offset:{W_KV}")
    if stag:
        a(f"v_mov_b32 v{vT1}, 2")
        set_flag(F_STAGE, vT1)
    stamp(7)
    stamp_val(15, sCnt)
    G2 = hG + 16
    a(f"s_mov_b32 s{sCnt}, 0\nv_mov_b32 v{vT1}, 3")
    if h2wait:
        a("s_waitcnt vmcnt(0)")
    def h2_issue(G):
        for i in range(4):
            a(f"buffer_load_dwordx4 {vr(G+4*i,4)}, v{hC}, {sr(SWS,4)}, 0 offen offset:{W_KV+1024*i} {gf}")
    def h2_check(G, pending):
        for i in range(4):
            b = G + 4*i
            a(f"s_waitcnt vmcnt({pending+3-i})")
            if i == 0:
                a(f"v_max3_u32 v{vT0}, v{b}, v{b+1}, v{b+2}\nv_max_u32 v{vT0}, v{vT0}, v{b+3}")
            else:
                a(f"v_max3_u32 v{vT0}, v{vT0}, v{b}, v{b+1}\nv_max3_u32 v{vT0}, v{vT0}, v{b+2}, v{b+3}")
        a(f"v_cmp_eq_u32 vcc, -1, v{vT0}")
    def h2_write(G):
        for i in range(4):
            a(f"ds_write_b128 v{hA+3}, {vr(G+4*i,4)} offset:{1024*i}")
    if h2mode == 0:
        a("L_h2:")
        h2_issue(G2)
        a(f"s_add_u32 s{sCnt}, s{sCnt}, 1")
        for i in range(4):
            b = G2 + 4*i
            a(f"s_waitcnt vmcnt({3-i})")
            a(f"ds_write_b128 v{hA+3}, {vr(b,4)} offset:{1024*i}")
            if i == 0:
                a(f"v_max3_u32 v{vT0}, v{b}, v{b+1}, v{b+2}\nv_max_u32 v{vT0}, v{vT0}, v{b+3}")
            else:
                a(f"v_max3_u32 v{vT0}, v{vT0}, v{b}, v{b+1}\nv_max3_u32 v{vT0}, v{vT0}, v{b+2}, v{b+3}")
        a(f"""v_cmp_eq_u32 vcc, -1, v{vT0}
s_bitcmp1_b32 s{sCnt}, 18
s_cbranch_scc1 L_h2_done
s_cbranch_vccz L_h2_done
s_waitcnt lgkmcnt(0)
s_branch L_h2
L_h2_done:""")
    elif h2mode == 1:
        a("L_h2:")
        h2_issue(G2)
        a(f"s_add_u32 s{sCnt}, s{sCnt}, 1")
        h2_check(G2, 0)
        a(f"""s_bitcmp1_b32 s{sCnt}, 18
s_cbranch_scc1 L_h2_done
s_cbranch_vccnz L_h2
L_h2_done:""")
        h2_write(G2)
    elif h2mode == 2:
        G3 = G2 + 16
        h2_issue(G2)
        a("L_h2:")
        h2_issue(G3)
        a(f"s_add_u32 s{sCnt}, s{sCnt}, 1")
        h2_check(G2, 4)
        a(f"s_cbranch_vccz L_h2_a")
        h2_issue(G2)
        h2_check(G3, 4)
        a(f"""s_bitcmp1_b32 s{sCnt}, 18
s_cbranch_scc1 L_h2_b
s_cbranch_vccnz L_h2
L_h2_b:""")
        h2_write(G3)
        a("s_branch L_h2_done\nL_h2_a:")
        h2_write(G2)
        a("L_h2_done:")
    set_flag(F_STAGE, vT1)
    stamp(8)
    stamp_val(12, sCnt)
    a(f"""s_cmp_lg_u32 s{sJ}, 0
s_cbranch_scc1 L_fin
v_mov_b32 v{vT0}, 0
s_mov_b32 s{sT}, {W_E}
s_mov_b64 exec, 1
buffer_store_dwordx2 {vr(hX+4,2)}, v{vT0}, {sr(SWS,4)}, s{sT} offen
s_mov_b64 exec, -1
L_fin:""")
    if stamps:
        a(f"""
s_load_dwordx2 s[16:17], s[0:1], 48
s_waitcnt lgkmcnt(0)
s_add_u32 s{SST}, s16, {STAMP_OFF}
s_addc_u32 s{SST+1}, s17, 0
s_mov_b32 s{SST+2}, {256*16*64}
s_mov_b32 s{SST+3}, 0x20000
s_lshl_b32 s{sT}, s2, 4
s_add_u32 s{sT}, s{sT}, s{sW}
s_lshl_b32 s{sT}, s{sT}, 6
v_lshlrev_b32 v{vT1}, 2, v{vL}
s_mov_b64 exec, 0xffff
buffer_store_dword v{vS}, v{vT1}, {sr(SST,4)}, s{sT} offen
""")
    a("L_end:\ns_endpgm")
    return a, k

def build(**kw):
    a, k = gen(**kw)
    txt = '.amdgcn_target "amdgcn-amd-amdhsa--gfx950"\n.text\n' + a.text()
    hdr = HEADER + f"; @launch grid=(256,1,1) block=(640,1,1) lds={LDS_BYTES}\n"
    return hdr + txt + descriptor(k, NVGPR, sgpr=80)

if __name__ == '__main__':
    V = eval(open(sys.argv[1]).read())
    for n, kw in V.items():
        open(n + '.s', 'w').write(build(**kw))
    print(' '.join(n + '.s' for n in V))
```

```python
import gen6
from gen2 import HEADER
DOC = """;
"""
txt = gen6.build(prefetch='pre', pfmask=7, onex8=True, h2mode=1, bar_at=3)
i = txt.index('.amdgcn_target')
txt = txt[:i] + DOC + txt[i:]
open('standalone__linear_kernel_rfa__prompt.s', 'w').write(txt)
open('final.s', 'w').write(txt)
```

```python
import sys
from asmlib import *
from gen2 import NAME, HEADER, LOG2E, CMUL, EPS, STAMP_OFF

sW, sH, sJ = 3, 18, 19
SK, SOUT, SOH, SWS, SOM = 20, 32, 36, 40, 44
sBase, sT, sU, sOff, sCnt, sMode, sXcc = 48, 49, 50, 52, 53, 54, 55
sTag = 56
sTmp64 = 58
sStamp = 60
sStamp0 = 62
SST = 64
sProg, sNeed, sPo = 68, 69, 70
sEv = 72
WS_HEAD = 8192
W_KV, W_R, W_R2, W_E = 0, 4096, 4096 + 256, 4096 + 512
L_FL = 0
L_Z = 384
L_KQ = 512
L_V, L_OM, L_PHI, L_KVB = L_KQ + 65536, L_KQ + 131072, L_KQ + 135168, L_KQ + 139264
F_CNT, F_MODE, F_STAGE, F_PROG = 0, 1, 2, 3
LDS_BYTES = L_KVB + 4096
vL, vN, vG, vT0, vT1, vT2, vS = 1, 2, 3, 4, 5, 6, 7
vFA = 8
vFL = 10
vF = 16
vPub, vM0, vM1, vTR0, vTR1, vPA = 20, 21, 22, 23, 24, 25
vPhi, vZ = 26, 28
vB = 30
TA, TB = 34, 38
vP, vGm, vD2, vRcp = 42, 46, 50, 54
vOA, vZA = 58, 59
OM, FR, KVB, PK = 64, 96, 128, 160
NVGPR = 168
SPIN = 1 << 16
LSPIN = 1 << 20

def gen(N=20, stamps=False, lf='nt', sf='nt', gf='sc1', force_slow=False, name=None, fill='nt', fillwide=True,
        spread=7, rdyat=12, zat=32, h1at=None, prefetch='helper', pfmask=15, vsplit=28, h2wait=True, bar_at=None, touch=True, NQ=None, fillmode='start', zat2=None, dual=False, h2mode=1, lateload=False, stag=None, gateA=None, gateB=None, gbit=3, onex8=False, st_first=False, compact=False, tlb=None, h1b=None):
    assert N % 4 == 0
    a = Asm()
    k = name or NAME + '_kernel'
    uid = [0]
    def stamp(i):
        if stamps:
            a(f"s_memrealtime s[{sStamp}:{sStamp+1}]\ns_waitcnt lgkmcnt(0)\nv_writelane_b32 v{vS}, s{sStamp}, {i}")
    def stamp_val(i, s):
        if stamps:
            a(f"v_writelane_b32 v{vS}, s{s}, {i}")
    def wait_flags(conds):
        uid[0] += 1
        lab = f"L_wf{uid[0]}"
        a(f"s_mov_b32 s{sCnt}, 0\n{lab}:")
        if len(conds) == 1:
            w = conds[0][0]
            a(f"ds_read_b32 v{vFL+w}, v{vFA} offset:{4*w}")
        else:
            a(f"ds_read_b128 {vr(vFL,4)}, v{vFA}")
        a(f"s_add_u32 s{sCnt}, s{sCnt}, 1\ns_bitcmp1_b32 s{sCnt}, 23\ns_cbranch_scc1 {lab}_x\ns_waitcnt lgkmcnt(0)")
        for w, m in conds:
            a(f"v_cmp_gt_i32 vcc, {m}, v{vFL+w}\ns_cbranch_vccnz {lab}")
        a(f"{lab}_x:")
    def set_flag(word, vreg, op='ds_write_b32'):
        a(f"s_mov_b64 exec, 1\n{op} v{vFA}, v{vreg} offset:{4*word}\ns_mov_b64 exec, -1")
    def store2(text):
        uid[0] += 1
        lab = f"L_st{uid[0]}"
        lines = text.strip().split('\n')
        a(f"s_cmp_eq_u32 s{sMode}, 1\ns_cbranch_scc0 {lab}_s")
        for ln in lines: a(ln)
        a(f"s_branch {lab}_d\n{lab}_s:")
        for ln in lines: a(ln + ' sc1')
        a(f"{lab}_d:")
    a(f""".globl {k}
.p2align 8
.type {k},@function
{k}:""")
    if stamps:
        a(f"s_memrealtime s[{sStamp0}:{sStamp0+1}]\nv_mov_b32 v{vS}, 0")
    lA, lP = 16, 20
    lag = (N - 1) // 4
    if bar_at is None:
        bar_at = lag + 1
    def code_prefetch(dst):
        a(f"""; pull this kernel's code into L2 (one lane per 128-byte line)
s_and_b32 s{sT}, s{sJ}, {pfmask}
s_cbranch_scc1 L_nopf
s_getpc_b64 s[{sTmp64}:{sTmp64+1}]
L_pc:
s_sub_u32 s{sTmp64}, s{sTmp64}, L_pc-{k}
s_subb_u32 s{sTmp64+1}, s{sTmp64+1}, 0
v_lshlrev_b32 v{vT2}, 7, v{vL}
v_min_u32 v{vT0}, L_end-{k}, v{vT2}
global_load_dword v{dst}, v{vT0}, s[{sTmp64}:{sTmp64+1}]
L_nopf:""")
    if onex8:
        a(f"s_load_dwordx8 s[4:11], s[0:1], 0")
    elif not lateload:
        a(f"s_load_dwordx2 s[{SK}:{SK+1}], s[0:1], 8")
    else:
        a(f"""v_cmp_gt_u32 vcc, 64, v0
s_cbranch_vccz L_nold
s_load_dwordx2 s[{SK}:{SK+1}], s[0:1], 8
s_load_dwordx8 s[4:11], s[0:1], 0
L_nold:""")
    a(f"""
v_readfirstlane_b32 s{sW}, v0
s_cmpk_ge_u32 s2, 256
s_cbranch_scc1 L_end
s_and_b32 s{sH}, s2, 15
s_lshr_b32 s{sJ}, s2, 4
s_lshl_b32 s{sT}, s{sH}, 20
s_lshl_b32 s{sU}, s{sJ}, 16
s_or_b32 s{sBase}, s{sT}, s{sU}
v_and_b32 v{vL}, 63, v0
v_mov_b32 v{vFA}, 0
v_lshlrev_b32 v{lP}, 2, v{vL}
s_cmp_eq_u32 s{sW}, 0
s_cbranch_scc1 L_loader
ds_write_b32 v{lP}, v{vFA}          ; flags start at zero""")
    if prefetch == 'pre':
        a(f"""s_and_b32 s{sT}, s{sJ}, {pfmask}
s_add_u32 s{sT}, s{sT}, s{sW}
s_cmpk_lg_u32 s{sT}, 128
s_cbranch_scc1 L_nopf
s_getpc_b64 s[{sTmp64}:{sTmp64+1}]
L_pc:
v_lshlrev_b32 v{vT2}, 7, v{vL}
v_min_u32 v{vT0}, L_end-L_pc, v{vT2}
global_load_dword v{PK}, v{vT0}, s[{sTmp64}:{sTmp64+1}]
L_nopf:""")
    a(f"""s_waitcnt lgkmcnt(0)
s_barrier                     ; B0
s_branch L_notloader
L_loader:
{'' if lateload or onex8 else 's_load_dwordx8 s[4:11], s[0:1], 0'}
v_lshrrev_b32 v{vT0}, 4, v0
v_and_b32 v{vT0}, 2, v{vT0}
v_xor_b32 v{vT0}, v{vT0}, v0
v_lshlrev_b32 v{lA}, 4, v{vT0}
s_mov_b32 s{SK+2}, 0x1000000
s_mov_b32 s{SK+3}, 0x20000
v_xor_b32 v{lA+1}, 64, v{lA}
v_xor_b32 v{lA+2}, 0x80, v{lA}
v_xor_b32 v{lA+3}, 0xc0, v{lA}
s_movk_i32 m0, {L_KQ}
s_mov_b32 s{sOff}, s{sBase}
s_movk_i32 s{sProg}, {-lag}
s_mov_b32 s{sEv}, {(1 << bar_at) | (1 << 16)}
s_mov_b32 s{sEv+1}, 0x10001
s_waitcnt lgkmcnt(0)""")
    if onex8:
        a(f"s_mov_b32 s{SK}, s6\ns_mov_b32 s{SK+1}, s7")
    if st_first:
        a(f"s_memrealtime s[{sTag}:{sTag+1}]")
    if stamps:
        a(f"v_writelane_b32 v{vS}, s{sStamp0}, 0")
    a(f"""L_ld:
s_waitcnt vmcnt({N-1})
buffer_load_dwordx4 v{lA}, {sr(SK,4)}, s{sOff} offen {lf} lds
s_waitcnt vmcnt({N-1})
buffer_load_dwordx4 v{lA+1}, {sr(SK,4)}, s{sOff} offen offset:1024 {lf} lds
s_waitcnt vmcnt({N-1})
buffer_load_dwordx4 v{lA+2}, {sr(SK,4)}, s{sOff} offen offset:2048 {lf} lds
v_mov_b32 v{vFL}, s{sProg}
s_cmp_lt_i32 s{sProg}, 1
s_waitcnt vmcnt({N-1})
s_cbranch_scc1 L_ld_noprog
ds_write_b32 v{lP}, v{vFL} offset:{4*F_PROG}
L_ld_noprog:
buffer_load_dwordx4 v{lA+3}, {sr(SK,4)}, s{sOff} offen offset:3072 {lf} lds
s_add_u32 s{sT}, s{sProg}, {lag + 1}
s_add_u32 s{sOff}, s{sOff}, 4096
s_add_u32 m0, m0, 4096
s_add_u32 s{sProg}, s{sProg}, 1
s_bitcmp1_b64 s[{sEv}:{sEv+1}], s{sT}
s_cbranch_scc0 L_ld
s_cmp_eq_u32 s{sT}, 16
s_cbranch_scc1 L_ld_toV
s_cmp_eq_u32 s{sT}, 32
s_cbranch_scc1 L_ld_toQ
s_cmp_eq_u32 s{sT}, 48
s_cbranch_scc1 L_ld_drain
s_setprio 2
s_mov_b32 s{SOM}, s10
s_mov_b32 s{SOM+1}, s11
s_mov_b32 s{SOM+2}, 4096
s_mov_b32 s{SOM+3}, 0x20000
s_mov_b32 s{sU}, m0
s_mov_b32 m0, {L_OM}
s_nop 0""")
    for t in range(4):
        a(f"buffer_load_dwordx4 v{lA+t}, {sr(SOM,4)}, 0 offen offset:{t*1024} lds")
    if tlb == 'vec':
        a(f"""; touch this workgroup's V and Q pages so that their translations are ready when the streams get there
v_mov_b32 v{vT1}, s{sBase}
s_mov_b64 exec, 1
global_load_dword v{vT2}, v{vT1}, s[8:9]
global_load_dword v{vT0}, v{vT1}, s[4:5]
s_mov_b64 exec, -1""")
    elif tlb == 'sca':
        a(f"""s_load_dword s{sTag}, s[8:9], s{sBase}
s_load_dword s{sTag+1}, s[4:5], s{sBase}""")
    a(f"""s_mov_b32 m0, s{sU}
s_barrier""")
    stamp(1)
    if st_first:
        a(f"v_writelane_b32 v{vS}, s{sTag}, 1")
    a(f"""s_branch L_ld
L_ld_toV:""")
    stamp(2)
    a(f"""s_mov_b32 s{SK}, s8
s_mov_b32 s{SK+1}, s9
s_mov_b32 s{sOff}, s{sBase}
s_branch L_ld
L_ld_toQ:""")
    stamp(3)
    a(f"""s_mov_b32 s{SK}, s4
s_mov_b32 s{SK+1}, s5
s_mov_b32 s{sOff}, s{sBase}
s_movk_i32 m0, {L_KQ}""")
    wait_flags([(F_CNT, 8)])
    lagq = lag
    def qloop(tag, NQ, first=32, last=48):
        lagq = (NQ - 1) // 4
        a(f"""s_movk_i32 s{sProg}, {first - lagq}
L_ldq{tag}:
s_waitcnt vmcnt({NQ-1})
buffer_load_dwordx4 v{lA}, {sr(SK,4)}, s{sOff} offen {lf} lds
s_waitcnt vmcnt({NQ-1})
buffer_load_dwordx4 v{lA+1}, {sr(SK,4)}, s{sOff} offen offset:1024 {lf} lds
s_waitcnt vmcnt({NQ-1})
buffer_load_dwordx4 v{lA+2}, {sr(SK,4)}, s{sOff} offen offset:2048 {lf} lds
v_mov_b32 v{vFL}, s{sProg}
s_waitcnt vmcnt({NQ-1})
ds_max_i32 v{lP}, v{vFL} offset:{4*F_PROG}
buffer_load_dwordx4 v{lA+3}, {sr(SK,4)}, s{sOff} offen offset:3072 {lf} lds
s_add_u32 s{sOff}, s{sOff}, 4096
s_add_u32 m0, m0, 4096
s_add_u32 s{sProg}, s{sProg}, 1
s_cmp_lt_i32 s{sProg}, {last - lagq}
s_cbranch_scc1 L_ldq{tag}""")
        return lagq
    def drain_to(upto, lg):
        for done in range(upto - lg, upto + 1):
            a(f"v_mov_b32 v{vFL}, {done}\ns_waitcnt vmcnt({(upto-done)*4})\nds_max_i32 v{lP}, v{vFL} offset:{4*F_PROG}")
    if stag:
        NA, NB, pre, rel, preB = stag
        a(f"s_bitcmp1_b32 s2, {gbit}\ns_cbranch_scc1 L_qB")
        if pre:
            qloop('A0', N, 32, 32 + pre)
        drain_to(32 + pre, lag)
        wait_flags([(F_STAGE, rel)])
        qloop('A', NA, 32 + pre)
        a("s_branch L_ld_drain\nL_qB:")
        if preB:
            qloop('B0', N, 32, 32 + preB)
        qloop('B', NB, 32 + preB)
        lagq = (max(NA, NB) - 1) // 4
    elif NQ is None or NQ == N:
        a("s_branch L_ld")
    else:
        lagq = qloop('', NQ)
    a("L_ld_drain:")
    stamp(4)
    for done in range(48 - lagq + ((48 - lagq) & 1), 49, 2):
        a(f"v_mov_b32 v{vFL}, {done}\ns_waitcnt vmcnt({(48-done)*4})\nds_max_i32 v{lP}, v{vFL} offset:{4*F_PROG}")
    stamp(5)
    a("s_branch L_fin" if stamps else "s_endpgm")
    a(f"""L_notloader:
s_load_dwordx2 s[12:13], s[0:1], 32
s_load_dwordx2 s[16:17], s[0:1], 48
s_lshr_b32 s{sW}, s{sW}, 6
s_cmp_eq_u32 s{sW}, 1
s_cbranch_scc1 L_helper""")
    if prefetch == 'first':
        a(f"s_cmp_lg_u32 s{sW}, 2\ns_cbranch_scc1 L_nopf")
        code_prefetch(PK)
    a(f"""
v_and_b32 v{vN}, 15, v0
v_bfe_u32 v{vG}, v0, 4, 2
s_mov_b32 s{SOUT+2}, 65536
s_mov_b32 s{SOUT+3}, 0x20000
s_sub_u32 s{sW}, s{sW}, 2
s_lshl_b32 s{sNeed}, s{sW}, 1
s_add_u32 s{sNeed}, s{sNeed}, 2
v_and_b32 v{vT1}, 7, v{vN}
v_lshlrev_b32 v{vT0}, 1, v{vT1}
v_xor_b32 v{vT0}, v{vG}, v{vT0}
v_lshlrev_b32 v{vT0}, 4, v{vT0}
v_lshl_add_u32 v{vT2}, v{vN}, 9, v{vT0}
s_lshl_b32 s{sT}, s{sW}, 13
v_add_u32 v{vT2}, {L_KQ}, v{vT2}
v_add_u32 v{vF}, s{sT}, v{vT2}
v_xor_b32 v{vF+1}, 64, v{vF}
v_xor_b32 v{vF+2}, 0x80, v{vF}
v_xor_b32 v{vF+3}, 0xc0, v{vF}
v_lshl_add_u32 v{vT0}, v{vT1}, 9, v{vT0}
v_add_u32 v{vB}, {L_OM}, v{vT0}
v_xor_b32 v{vB+1}, 64, v{vB}
v_xor_b32 v{vB+2}, 0x80, v{vB}
v_xor_b32 v{vB+3}, 0xc0, v{vB}
v_lshlrev_b32 v{vT0}, 11, v{vG}
v_lshl_add_u32 v{vT0}, v{vN}, 4, v{vT0}
v_add_u32 v{vOA}, s{sT}, v{vT0}
v_lshlrev_b32 v{vT0}, 2, v{vG}
v_sub_u32 v{vT0}, v{vN}, v{vT0}
v_mov_b32 v{vT1}, 0xffff
v_mov_b32 v{vT2}, 0xffff0000
v_cmp_eq_u32 vcc, 0, v{vT0}
v_cmp_eq_u32 s[{sTmp64}:{sTmp64+1}], 1, v{vT0}
v_cndmask_b32 v{vM0}, 0, v{vT1}, vcc
v_cmp_eq_u32 vcc, 2, v{vT0}
v_cndmask_b32 v{vM0}, v{vM0}, v{vT2}, s[{sTmp64}:{sTmp64+1}]
v_cmp_eq_u32 s[{sTmp64}:{sTmp64+1}], 3, v{vT0}
v_cndmask_b32 v{vM1}, 0, v{vT1}, vcc
v_and_b32 v{TA}, 0x3e803e80, v{vM0}
v_cndmask_b32 v{vM1}, v{vM1}, v{vT2}, s[{sTmp64}:{sTmp64+1}]
v_and_b32 v{TA+1}, 0x3e803e80, v{vM1}
v_lshrrev_b32 v{vT0}, 2, v{vL}
v_and_b32 v{vT1}, 7, v{vT0}
s_lshl_b32 s{sT}, s{sW}, 1
v_xor_b32 v{vT1}, s{sT}, v{vT1}
v_lshlrev_b32 v{vT1}, 5, v{vT1}
v_lshl_add_u32 v{vTR0}, v{vT0}, 9, v{vT1}
v_and_b32 v{vT1}, 3, v{vL}
v_lshl_add_u32 v{vTR0}, v{vT1}, 3, v{vTR0}
v_add_u32 v{vTR0}, {L_V}, v{vTR0}
v_xor_b32 v{vTR1}, 32, v{vTR0}
v_lshlrev_b32 v{vT0}, 4, v{vL}
v_add_u32 v{vPA}, {L_PHI}, v{vT0}
s_and_b32 s{sU}, s{sJ}, {spread}
s_lshl_b32 s{sU}, s{sU}, 3
s_add_u32 s{sU}, s{sU}, s{sW}
s_lshl_b32 s{sU}, s{sU}, 10
v_add_u32 v{vPub}, s{sU}, v{vT0}
v_and_b32 v{vZA}, 1, v{vG}
v_lshlrev_b32 v{vZA}, 3, v{vZA}
v_add_u32 v{vZA}, {L_Z}, v{vZA}
v_cmp_gt_u32 s[{sTmp64}:{sTmp64+1}], 32, v{vL}
s_lshr_b32 s{sT}, s{sW}, 1
s_lshl_b32 s{sT}, s{sT}, 10
s_and_b32 s{sU}, s{sW}, 1
s_lshl_b32 s{sU}, s{sU}, 3
s_add_u32 s{sT}, s{sT}, s{sU}
v_add_u32 v{vT2}, s{sT}, v{vPA}
s_waitcnt lgkmcnt(0)
s_add_u32 s{SOUT}, s12, s{sBase}
s_addc_u32 s{SOUT+1}, s13, 0""")
    if stamps:
        a(f"v_writelane_b32 v{vS}, s{sStamp0}, 0")
    stamp(1)
    wait_flags([(F_PROG, bar_at + 1)])
    for u in range(8):
        a(f"ds_read_b128 {vr(OM+4*u,4)}, v{vB+(u&3)} offset:{256*(u>>2)}")
    a(f"""; B-fragment read addresses for the output phase
v_and_b32 v{vT0}, 1, v{vG}
v_lshlrev_b32 v{vT0}, 11, v{vT0}
v_lshl_add_u32 v{vT0}, v{vN}, 6, v{vT0}
v_lshrrev_b32 v{vT1}, 2, v{vN}
v_lshl_add_u32 v{vT0}, v{vT1}, 4, v{vT0}
v_add_u32 v{vB}, {L_KVB}, v{vT0}
v_xor_b32 v{vB+1}, 16, v{vB}
v_xor_b32 v{vB+2}, 32, v{vB}
v_xor_b32 v{vB+3}, 48, v{vB}
v_mov_b32 v{vT1}, 1""")
    wait_flags([(F_PROG, f"s{sNeed}")])
    stamp(2)
    def phi(isq):
        for u in range(8):
            a(f"ds_read_b128 {vr(FR+4*u,4)}, v{vF+(u&3)} offset:{256*(u>>2)}")
        gd, cc = (TB+2, TA+2) if isq else (TA+2, TB+2)
        a(f"v_mov_b32 v{cc}, 0xbd00bd00\nv_mov_b32 v{cc+1}, 0xbd00bd00")
        for u in range(8):
            a(f"s_waitcnt lgkmcnt({7-u})")
            c1 = '0' if u == 0 else vr(vP, 4)
            c2 = '0' if u == 0 else vr(vGm, 4)
            a(f"v_mfma_f32_16x16x32_bf16 {vr(vGm,4)}, {vr(FR+4*u,4)}, {vr(FR+4*u,4)}, {c2}")
            if isq:
                a(f"v_mfma_f32_16x16x32_bf16 {vr(vP,4)}, {vr(OM+4*u,4)}, {vr(FR+4*u,4)}, {c1}")
            else:
                a(f"v_mfma_f32_16x16x32_bf16 {vr(vP,4)}, {vr(FR+4*u,4)}, {vr(OM+4*u,4)}, {c1}")
        a(f"""
v_cvt_pk_bf16_f32 v{gd}, v{vGm}, v{vGm+1}
v_cvt_pk_bf16_f32 v{gd+1}, v{vGm+2}, v{vGm+3}
v_and_b32 v{gd}, v{gd}, v{vM0}
v_and_b32 v{gd+1}, v{gd+1}, v{vM1}
v_cvt_pk_bf16_f32 v{TB}, v{vP}, v{vP+1}
v_cvt_pk_bf16_f32 v{TB+1}, v{vP+2}, v{vP+3}
v_mfma_f32_16x16x32_bf16 {vr(vD2,4)}, {vr(TA,4)}, {vr(TB,4)}, 0
""")
        for op in (lambda r: f"v_cvt_pk_bf16_f32 v{r}, 0, v{r}",
                   lambda r: f"v_mul_f32 v{r}, {LOG2E}, v{r}",
                   lambda r: f"v_exp_f32 v{r}, v{r}",
                   lambda r: f"v_cvt_pk_bf16_f32 v{r}, 0, v{r}",
                   lambda r: f"v_mul_f32 v{r}, {CMUL}, v{r}",
                   lambda r: f"v_cvt_pk_bf16_f32 v{r}, 0, v{r}",
                   lambda r: f"v_add_f32 v{r}, {EPS}, v{r}"):
            for r in range(4):
                a(op(vD2 + r))
        a(f"""
v_cvt_pk_bf16_f32 v{vPhi}, v{vD2}, v{vD2+1}
v_cvt_pk_bf16_f32 v{vPhi+1}, v{vD2+2}, v{vD2+3}
""")
    phi(False)
    a(f"ds_write_b64 v{vT2}, {vr(vPhi,2)}")
    set_flag(F_CNT, vT1, 'ds_add_u32')
    a(f"s_add_u32 s{sNeed}, s{sNeed}, 32")
    stamp(3)
    AF, BF, D0, D1 = KVB, FR, vP, vGm
    def v_reads(s):
        for u in range(2):
            for hh in range(2):
                a(f"ds_read_b64_tr_b16 {vr(BF+8*s+4*u+2*hh,2)}, v{vTR0+u} offset:{(32*s+16*hh)*512}")
    def v_mf(s):
        c = lambda D: '0' if s == 0 else vr(D, 4)
        a(f"""v_mfma_f32_16x16x32_bf16 {vr(D0,4)}, {vr(AF+4*s,4)}, {vr(BF+8*s,4)}, {c(D0)}
v_mfma_f32_16x16x32_bf16 {vr(D1,4)}, {vr(AF+4*s,4)}, {vr(BF+8*s+4,4)}, {c(D1)}""")
    wait_flags([(F_PROG, vsplit), (F_CNT, 8), (F_MODE, 1)])
    stamp(4)
    a(f"v_readfirstlane_b32 s{sMode}, v{vFL+F_MODE}\ns_waitcnt vmcnt(0)                  ; code prefetch (wave 2) has long landed")
    for s in range(4):
        a(f"ds_read_b128 {vr(AF+4*s,4)}, v{vPA} offset:{1024*s}")
    v_reads(0); v_reads(1)
    a("s_waitcnt lgkmcnt(4)"); v_mf(0)
    v_reads(2)
    a("s_waitcnt lgkmcnt(4)"); v_mf(1)
    a("s_waitcnt lgkmcnt(0)"); v_mf(2)
    wait_flags([(F_PROG, 32)])
    stamp(5)
    v_reads(3)
    a(f"s_waitcnt lgkmcnt(2)\nv_mfma_f32_16x16x32_bf16 {vr(D0,4)}, {vr(AF+12,4)}, {vr(BF+24,4)}, {vr(D0,4)}")
    a(f"s_waitcnt lgkmcnt(0)\nv_mfma_f32_16x16x32_bf16 {vr(D1,4)}, {vr(AF+12,4)}, {vr(BF+28,4)}, {vr(D1,4)}")
    for r in range(4):
        a(f"v_cndmask_b32 v{vD2+r}, v{D1+r}, v{D0+r}, s[{sTmp64}:{sTmp64+1}]")
    for r in range(4):
        a(f"v_min_u32 v{vD2+r}, -2, v{vD2+r}")
    store2(f"buffer_store_dwordx4 {vr(vD2,4)}, v{vPub}, {sr(SOUT,4)}, 0 offen")
    if h1at is not None:
        set_flag(F_CNT, vT1, 'ds_add_u32')
    stamp(6)
    wait_flags([(F_PROG, f"s{sNeed}")])
    stamp(7)
    phi(True)
    a(f"""v_cndmask_b32 v{vPhi}, 0, v{vPhi}, s[{sTmp64}:{sTmp64+1}]
v_cndmask_b32 v{vPhi+1}, 0, v{vPhi+1}, s[{sTmp64}:{sTmp64+1}]""")
    stamp(8)
    wait_flags([(F_STAGE, 1)])
    a(f"""ds_read_b64 {vr(vZ,2)}, v{vZA}
s_waitcnt lgkmcnt(0)
v_mfma_f32_16x16x16_bf16 {vr(vD2,4)}, {vr(vPhi,2)}, {vr(vZ,2)}, 0""")
    for op in (lambda r: f"v_cvt_pk_bf16_f32 v{vRcp+r}, 0, v{vD2+r}",
               lambda r: f"v_add_f32 v{vRcp+r}, {EPS}, v{vRcp+r}",
               lambda r: f"v_cvt_pk_bf16_f32 v{vRcp+r}, 0, v{vRcp+r}",
               lambda r: f"v_rcp_f32 v{vRcp+r}, v{vRcp+r}"):
        for r in range(4):
            a(op(r))
    stamp(9)
    if gateA or gateB:
        a(f"s_bitcmp1_b32 s2, {gbit}\ns_cselect_b32 s{sNeed}, {gateB or 0}, {gateA or 0}")
        wait_flags([(F_STAGE, 3), (F_PROG, f"s{sNeed}")])
    else:
        wait_flags([(F_STAGE, 3)])
    stamp(10)
    for i in range(8):
        a(f"ds_read_b128 {vr(KVB+4*i,4)}, v{vB+(i&3)} offset:{1024*(i>>2)}")
    ACC = OM
    def out_mf(hf, c):
        i = hf*4 + (c >> 1)
        if c % 2 == 0:
            a(f"s_waitcnt lgkmcnt({7-i})")
        a(f"v_mfma_f32_16x16x16_bf16 {vr(ACC+32*hf+4*c,4)}, {vr(vPhi,2)}, {vr(KVB+4*i+2*(c&1),2)}, 0")
    def scale(x, r):
        a(f"v_cvt_pk_bf16_f32 v{x}, 0, v{x}")
        a(f"v_cvt_pk_bf16_f32 v{x+1}, 0, v{x+1}")
        a(f"v_pk_mul_f32 {vr(x,2)}, {vr(x,2)}, {vr(vRcp+r,2)}")
    for c in range(8):
        out_mf(0, c)
        if c >= 3:
            scale(ACC + 4*(c-3), 0)
    for c in range(5, 8):
        out_mf(1, c - 5)
        scale(ACC + 4*c, 0)
    cnt = 0
    for hf in range(2):
        for r in range(4):
            regs = [ACC+32*hf+4*c+r for c in range(8)]
            if r % 2 == 0 and (hf, r) != (0, 0):
                for ci, x in enumerate(regs):
                    scale(x, r)
                    if (hf, r) == (0, 2) and ci < 5:
                        out_mf(1, 3 + ci)
            pkr = PK + 4*(cnt % 2); cnt += 1
            for c2 in range(4):
                a(f"v_cvt_pk_bf16_f32 v{pkr+c2}, v{regs[2*c2]}, v{regs[2*c2+1]}")
            a(f"buffer_store_dwordx4 {vr(pkr,4)}, v{vOA}, {sr(SOUT,4)}, 0 offen offset:{r*512+hf*256} {sf}")
            if cnt == 1:
                stamp(11)
    stamp(12)
    if stamps:
        a("s_waitcnt vmcnt(0)")
        stamp(13)
        a(f"s_add_u32 s{sW}, s{sW}, 2\ns_branch L_fin")
    else:
        a("s_endpgm")
    hA, hC, hZ, hR, hK = 16, 20, 21, 22, 23
    hONE, hAF, hD, hG = 24, 28, 44, 64
    hX = 48
    a(f"""L_helper:
s_setprio 3""")
    if prefetch == 'helper':
        code_prefetch(hG + 31)
    a(f"""s_mul_i32 s{sT}, s{sH}, {WS_HEAD}
s_waitcnt lgkmcnt(0)
s_add_u32 s{SWS}, s16, s{sT}
s_addc_u32 s{SWS+1}, s17, 0
s_load_dwordx2 s[{sTag}:{sTag+1}], s[{SWS}:{SWS+1}], {W_E}""")
    if stamps:
        a(f"v_writelane_b32 v{vS}, s{sStamp0}, 0")
    a(f"""s_mov_b32 s{SWS+2}, {WS_HEAD}
s_mov_b32 s{SWS+3}, 0x20000
s_add_u32 s{SOUT}, s12, s{sBase}
s_addc_u32 s{SOUT+1}, s13, 0
s_mov_b32 s{SOUT+2}, 65536
s_mov_b32 s{SOUT+3}, 0x20000
s_lshl_b32 s{sT}, s{sH}, 20
s_add_u32 s{SOH}, s12, s{sT}
s_addc_u32 s{SOH+1}, s13, 0
s_mov_b32 s{SOH+2}, 0x100000
s_mov_b32 s{SOH+3}, 0x20000
s_getreg_b32 s{sXcc}, hwreg(HW_REG_XCC_ID, 0, 4)
v_and_b32 v{vN}, 15, v0
v_bfe_u32 v{vG}, v0, 4, 2
v_mov_b32 v{hONE}, -1
v_mov_b32 v{hONE+1}, -1
v_mov_b32 v{hONE+2}, -1
v_mov_b32 v{hONE+3}, -1
v_lshlrev_b32 v{hC}, 4, v{vL}
s_and_b32 s{sPo}, s{sJ}, {spread}
s_add_u32 s{sU}, s{sPo}, 1
s_and_b32 s{sU}, s{sU}, 7
s_lshl_b32 s{sU}, s{sU}, 13
s_lshl_b32 s{sPo}, s{sPo}, 13
v_add_u32 v{hX}, 4096, v{hC}
v_and_b32 v{vT0}, 0x2f, v{vL}
v_cmp_eq_u32 vcc, 0, v{vT0}
v_lshlrev_b32 v{vT0}, 4, v{vG}
v_add_u32 v{vT0}, s{sU}, v{vT0}
v_mov_b32 v{vT1}, 0x7fffff00
v_cndmask_b32 v{hZ}, v{vT1}, v{vT0}, vcc
v_lshrrev_b32 v{vT0}, 3, v{vN}
s_lshl_b32 s{sT}, s{sJ}, 1
v_add_u32 v{vT0}, s{sT}, v{vT0}
v_bfe_u32 v{vT2}, v{vT0}, 2, 2
v_lshlrev_b32 v{hK}, 6, v{vT0}
v_bfe_u32 v{vT0}, v{vN}, 1, 2
v_xor_b32 v{vT0}, v{vT0}, v{vT2}
v_lshl_add_u32 v{hK}, v{vT0}, 4, v{hK}
v_and_b32 v{vT0}, 1, v{vN}
v_lshl_add_u32 v{hK}, v{vT0}, 3, v{hK}
v_lshl_add_u32 v{hK}, v{vG}, 11, v{hK}
v_cmp_gt_u32 vcc, 32, v{vL}
v_lshlrev_b32 v{hR}, 3, v{vN}
v_lshlrev_b32 v{vT2}, 7, v{vL}
v_cndmask_b32 v{hK}, v{vT1}, v{hK}, vcc
""")
    def big_fill():
        if fillwide:
            for t in range(8):
                a(f"buffer_load_dwordx4 {vr(hG+4*(t&3),4)}, v{hC if t < 4 else hF}, {sr(SOUT,4)}, s{sPo} offen offset:{(t&3)*1024} {fill}")
        else:
            a(f"buffer_load_dword v{hG}, v{hF}, {sr(SOUT,4)}, s{sPo} offen {fill}")
    hF = 56
    a(f"v_mov_b32 v{hF}, v{hX if fillwide else vT2}")
    if fillmode == 'start':
        big_fill()
    a(f"buffer_load_dword v{hAF}, v{hZ}, {sr(SOUT,4)}, 0 offen {fill}")
    a(f"buffer_load_dword v{hAF+1}, v{hK}, {sr(SWS,4)}, 0 offen offset:{W_KV} {fill}")
    def clear(fl):
        for t in range(8):
            a(f"buffer_store_dwordx4 {vr(hONE,4)}, v{hC if t < 4 else hX}, {sr(SOUT,4)}, s{sPo} offen offset:{(t&3)*1024} {fl}")
        a(f"buffer_store_dwordx4 {vr(hONE,4)}, v{hZ}, {sr(SOUT,4)}, 0 offen {fl}")
        a(f"buffer_store_dwordx2 {vr(hONE,2)}, v{hK}, {sr(SWS,4)}, 0 offen offset:{W_KV} {fl}")
    def ready(off):
        a(f"""s_lshl_b32 s{sT}, s{sJ}, 3
s_add_u32 s{sT}, s{sT}, {off}
v_mov_b32 v{vT0}, 0
s_waitcnt vmcnt(0)
s_mov_b64 exec, 1
buffer_store_dwordx2 {vr(hX+4,2)}, v{vT0}, {sr(SWS,4)}, s{sT} offen sc1
s_mov_b64 exec, -1""")
    def wait_ready(off, lab):
        a(f"""s_mov_b32 s{sCnt}, 0
s_mov_b32 s{sT}, {off}
{lab}:
buffer_load_dwordx2 {vr(hG,2)}, v{hR}, {sr(SWS,4)}, s{sT} offen sc1
s_add_u32 s{sCnt}, s{sCnt}, 1
s_waitcnt vmcnt(0)
v_and_b32 v{hG+2}, 15, v{hG}
v_and_b32 v{hG}, -16, v{hG}
v_cmp_ne_u64 vcc, s[{sTag}:{sTag+1}], {vr(hG,2)}
s_bitcmp1_b32 s{sCnt}, 18
s_cbranch_scc1 {lab}_done
s_cbranch_vccnz {lab}
{lab}_done:""")
    clear('')
    a(f"""s_waitcnt lgkmcnt(0)
s_add_u32 s{sTag}, s{sTag}, 16
s_addc_u32 s{sTag+1}, s{sTag+1}, 0
s_and_b32 s{sTag}, s{sTag}, -16
s_or_b32 s{sT}, s{sTag}, s{sXcc}
v_mov_b32 v{hX+4}, s{sT}
v_mov_b32 v{hX+5}, s{sTag+1}""")
    ready(W_R)
    stamp(1)
    a(f"""; hop-1 gather address: hi*(65536+slot) + j*512 + (l&31)*16 ; z gather: p*65536 + slot(p+1) + g2*16
v_lshrrev_b32 v{vT1}, 5, v{vL}
v_mul_u32_u24 v{hA}, {65536 + 8192*(spread & 1)}, v{vT1}
v_and_b32 v{vT1}, 31, v{vL}
v_lshl_add_u32 v{hA}, v{vT1}, 4, v{hA}
s_lshl_b32 s{sT}, s{sJ}, 9
v_add_u32 v{hA}, s{sT}, v{hA}
v_and_b32 v{vT1}, 1, v{vG}
v_lshlrev_b32 v{hA+2}, 3, v{vT1}
v_add_u32 v{hA+2}, {L_Z}, v{hA+2}
v_lshlrev_b32 v{vT1}, 4, v{vT1}
v_lshl_add_u32 v{hA+1}, v{vN}, 16, v{vT1}
v_and_b32 v{vT1}, {spread}, v{vN}
v_add_u32 v{vT1}, 1, v{vT1}
v_and_b32 v{vT1}, 7, v{vT1}
v_lshl_add_u32 v{hA+1}, v{vT1}, 13, v{hA+1}
v_add_u32 v{hA+3}, {L_KVB}, v{hC}""")
    hK2 = 57
    if dual:
        a(f"""; pair mode: gather 1 KiB (slices 2i, 2i+1) from every partial, publish both slices
s_lshr_b32 s{sT}, s{sJ}, 1
s_lshl_b32 s{sU}, s{sT}, 10
v_add_u32 v{hA}, s{sU}, v{hC}
v_lshrrev_b32 v{vT0}, 5, v{vL}
v_lshlrev_b32 v{vT0}, 1, v{vT0}
v_lshrrev_b32 v{vT1}, 3, v{vN}
v_add_u32 v{vT0}, v{vT0}, v{vT1}
s_lshl_b32 s{sU}, s{sT}, 2
v_add_u32 v{vT0}, s{sU}, v{vT0}
v_lshlrev_b32 v{hK2}, 6, v{vT0}
v_and_b32 v{vT1}, 7, v{vN}
v_lshlrev_b32 v{vT1}, 3, v{vT1}
s_and_b32 s{sT}, s{sT}, 3
s_lshl_b32 s{sT}, s{sT}, 4
v_xor_b32 v{vT1}, s{sT}, v{vT1}
v_add_u32 v{hK2}, v{hK2}, v{vT1}
v_and_b32 v{vT1}, 1, v{vG}
v_lshl_add_u32 v{hK2}, v{vT1}, 11, v{hK2}""")
    wait_flags([(F_PROG, rdyat)])
    stamp(2)
    wait_ready(W_R, 'L_rdy1')
    stamp(3)
    stamp_val(13, sCnt)
    a(f"""v_cmp_ne_u32 vcc, s{sXcc}, v{hG+2}
s_mov_b32 s{sMode}, 1""")
    if not force_slow:
        a("s_cbranch_vccz L_mode_done")
    a(f"s_mov_b32 s{sMode}, 2")
    clear('sc1')
    ready(W_R2)
    wait_ready(W_R2, 'L_rdy2')
    a(f"""L_mode_done:
v_mov_b32 v{vT1}, s{sMode}""")
    set_flag(F_MODE, vT1)
    a(f"""v_add_u32 v{vT0}, {L_PHI}, v{hC}
v_mov_b32 v{hONE}, 0x3f803f80
v_mov_b32 v{hONE+1}, 0x3f803f80
v_mov_b32 v{hONE+2}, 0x3f803f80
v_mov_b32 v{hONE+3}, 0x3f803f80""")
    wait_flags([(F_CNT, 8)])
    stamp(4)
    for s in range(4):
        a(f"ds_read_b128 {vr(hAF+4*s,4)}, v{vT0} offset:{1024*s}")
    for s in range(4):
        a(f"s_waitcnt lgkmcnt({3-s})\nv_mfma_f32_16x16x32_bf16 {vr(hD,4)}, {vr(hAF+4*s,4)}, {vr(hONE,4)}, {'0' if s == 0 else vr(hD,4)}")
    for r in range(4):
        a(f"v_min_u32 v{hD+r}, -2, v{hD+r}")
    store2(f"buffer_store_dwordx4 {vr(hD,4)}, v{hZ}, {sr(SOUT,4)}, 0 offen")
    wait_flags([(F_PROG, zat)])
    stamp(5)
    a(f"""s_mov_b32 s{sCnt}, 0
L_zg:
buffer_load_dwordx4 {vr(hX,4)}, v{hA+1}, {sr(SOH,4)}, 0 offen {gf}
s_add_u32 s{sCnt}, s{sCnt}, 1
s_waitcnt vmcnt(0)
v_max3_u32 v{vT0}, v{hX}, v{hX+1}, v{hX+2}
v_max_u32 v{vT0}, v{vT0}, v{hX+3}
v_cmp_eq_u32 vcc, -1, v{vT0}
s_bitcmp1_b32 s{sCnt}, 18
s_cbranch_scc1 L_zg_done
s_cbranch_vccnz L_zg
L_zg_done:""")
    stamp_val(14, sCnt)
    def h1_issue(G=None):
        G = hG if G is None else G
        for i in range(16 if dual else 8):
            a(f"s_mov_b32 s{sT}, {i*0x10000 + (i & spread)*8192 if dual else i*0x20000 + ((2*i) & spread)*8192}")
            a(f"buffer_load_dwordx4 {vr(G+4*i,4)}, v{hA}, {sr(SOH,4)}, s{sT} offen {gf}")
    def z_reduce():
        for sh in (8, 4, 2, 1):
            for r in range(4):
                a(f"v_add_f32_dpp v{hX+r}, v{hX+r}, v{hX+r} row_ror:{sh} row_mask:0xf bank_mask:0xf")
        a(f"""v_cvt_pk_bf16_f32 v{hX}, v{hX}, v{hX+1}
v_cvt_pk_bf16_f32 v{hX+1}, v{hX+2}, v{hX+3}
v_mov_b32 v{vT1}, 1
s_mov_b64 exec, 0x10001
ds_write_b64 v{hA+2}, {vr(hX,2)}
ds_write_b32 v{vFA}, v{vT1} offset:{4*F_STAGE}
s_mov_b64 exec, -1""")
    if h1at is None:
        stamp(6)
        h1_issue()
        z_reduce()
        if h1b:
            HB = hG + 32
            wait_flags([(F_PROG, h1b)])
            h1_issue(HB)
            a(f"s_mov_b32 s{sCnt}, 1")
            for i in range(8):
                a(f"s_waitcnt vmcnt({15-i})")
                b = hG + 4*i
                if i == 0:
                    a(f"v_max3_u32 v{vT0}, v{b}, v{b+1}, v{b+2}\nv_max_u32 v{vT0}, v{vT0}, v{b+3}")
                else:
                    a(f"v_max3_u32 v{vT0}, v{vT0}, v{b}, v{b+1}\nv_max3_u32 v{vT0}, v{vT0}, v{b+2}, v{b+3}")
                    a(f"v_pk_add_f32 {vr(hG,2)}, {vr(hG,2)}, {vr(b,2)}\nv_pk_add_f32 {vr(hG+2,2)}, {vr(hG+2,2)}, {vr(b+2,2)}")
            a(f"v_cmp_eq_u32 vcc, -1, v{vT0}")
            for r in range(4):
                a(f"v_mov_b32 v{hD+r}, v{hG+r}")
            a("s_cbranch_vccz L_h1_done\ns_waitcnt vmcnt(0)")
            for r in range(32):
                a(f"v_mov_b32 v{hG+r}, v{HB+r}")
            a("s_branch L_h1_check\nL_h1:")
        else:
            a(f"s_mov_b32 s{sCnt}, 0\ns_branch L_h1_check\nL_h1:")
    else:
        z_reduce()
        if fillmode == 'afterpub':
            wait_flags([(F_CNT, 16)])
            big_fill()
        if h1at == 0:
            a("s_waitcnt vmcnt(0)")
        else:
            wait_flags([(F_CNT, 16), (F_PROG, h1at)])
        stamp(6)
        a(f"s_mov_b32 s{sCnt}, 0\nL_h1:")
    h1_issue()
    a(f"L_h1_check:\ns_add_u32 s{sCnt}, s{sCnt}, 1")
    n1 = 16 if dual else 8
    for i in range(n1):
        a(f"s_waitcnt vmcnt({n1-1-i})")
        b = hG + 4*i
        if i == 0:
            a(f"v_max3_u32 v{vT0}, v{b}, v{b+1}, v{b+2}\nv_max_u32 v{vT0}, v{vT0}, v{b+3}")
        else:
            a(f"v_max3_u32 v{vT0}, v{vT0}, v{b}, v{b+1}\nv_max3_u32 v{vT0}, v{vT0}, v{b+2}, v{b+3}")
            a(f"v_pk_add_f32 {vr(hG,2)}, {vr(hG,2)}, {vr(b,2)}\nv_pk_add_f32 {vr(hG+2,2)}, {vr(hG+2,2)}, {vr(b+2,2)}")
    a(f"""v_cmp_eq_u32 vcc, -1, v{vT0}""")
    if dual:
        a(f"""v_cvt_pk_bf16_f32 v{hD}, v{hG}, v{hG+1}
v_cvt_pk_bf16_f32 v{hD+1}, v{hG+2}, v{hG+3}
v_min_u32 v{hD}, -2, v{hD}
v_min_u32 v{hD+1}, -2, v{hD+1}""")
    else:
        for r in range(4):
            a(f"v_mov_b32 v{hD+r}, v{hG+r}")
    a(f"""s_bitcmp1_b32 s{sCnt}, 18
s_cbranch_scc1 L_h1_done
s_cbranch_vccnz L_h1
L_h1_done:""")
    if dual:
        store2(f"buffer_store_dwordx2 {vr(hD,2)}, v{hK2}, {sr(SWS,4)}, 0 offen offset:{W_KV}")
    else:
        for r in range(4):
            a(f"v_permlane32_swap_b32 v{hG+r}, v{hD+r}")
        a(f"""v_pk_add_f32 {vr(hG,2)}, {vr(hG,2)}, {vr(hD,2)}
v_pk_add_f32 {vr(hG+2,2)}, {vr(hG+2,2)}, {vr(hD+2,2)}
v_cvt_pk_bf16_f32 v{hG+8}, v{hG}, v{hG+1}
v_cvt_pk_bf16_f32 v{hG+9}, v{hG+2}, v{hG+3}
v_min_u32 v{hG+8}, -2, v{hG+8}
v_min_u32 v{hG+9}, -2, v{hG+9}""")
        store2(f"buffer_store_dwordx2 {vr(hG+8,2)}, v{hK}, {sr(SWS,4)}, 0 offen offset:{W_KV}")
    if stag:
        a(f"v_mov_b32 v{vT1}, 2")
        set_flag(F_STAGE, vT1)
    stamp(7)
    stamp_val(15, sCnt)
    G2 = hG + 16
    a(f"s_mov_b32 s{sCnt}, 0\nv_mov_b32 v{vT1}, 3")
    if h2wait:
        a("s_waitcnt vmcnt(0)")
    def h2_issue(G):
        for i in range(4):
            a(f"buffer_load_dwordx4 {vr(G+4*i,4)}, v{hC}, {sr(SWS,4)}, 0 offen offset:{W_KV+1024*i} {gf}")
    def h2_check(G, pending):
        for i in range(4):
            b = G + 4*i
            a(f"s_waitcnt vmcnt({pending+3-i})")
            if i == 0:
                a(f"v_max3_u32 v{vT0}, v{b}, v{b+1}, v{b+2}\nv_max_u32 v{vT0}, v{vT0}, v{b+3}")
            else:
                a(f"v_max3_u32 v{vT0}, v{vT0}, v{b}, v{b+1}\nv_max3_u32 v{vT0}, v{vT0}, v{b+2}, v{b+3}")
        a(f"v_cmp_eq_u32 vcc, -1, v{vT0}")
    def h2_write(G):
        for i in range(4):
            a(f"ds_write_b128 v{hA+3}, {vr(G+4*i,4)} offset:{1024*i}")
    if h2mode == 0:
        a("L_h2:")
        h2_issue(G2)
        a(f"s_add_u32 s{sCnt}, s{sCnt}, 1")
        for i in range(4):
            b = G2 + 4*i
            a(f"s_waitcnt vmcnt({3-i})")
            a(f"ds_write_b128 v{hA+3}, {vr(b,4)} offset:{1024*i}")
            if i == 0:
                a(f"v_max3_u32 v{vT0}, v{b}, v{b+1}, v{b+2}\nv_max_u32 v{vT0}, v{vT0}, v{b+3}")
            else:
                a(f"v_max3_u32 v{vT0}, v{vT0}, v{b}, v{b+1}\nv_max3_u32 v{vT0}, v{vT0}, v{b+2}, v{b+3}")
        a(f"""v_cmp_eq_u32 vcc, -1, v{vT0}
s_bitcmp1_b32 s{sCnt}, 18
s_cbranch_scc1 L_h2_done
s_cbranch_vccz L_h2_done
s_waitcnt lgkmcnt(0)
s_branch L_h2
L_h2_done:""")
    elif h2mode == 1:
        a("L_h2:")
        h2_issue(G2)
        a(f"s_add_u32 s{sCnt}, s{sCnt}, 1")
        h2_check(G2, 0)
        a(f"""s_bitcmp1_b32 s{sCnt}, 18
s_cbranch_scc1 L_h2_done
s_cbranch_vccnz L_h2
L_h2_done:""")
        h2_write(G2)
    elif h2mode == 2:
        G3 = G2 + 16
        h2_issue(G2)
        a("L_h2:")
        h2_issue(G3)
        a(f"s_add_u32 s{sCnt}, s{sCnt}, 1")
        h2_check(G2, 4)
        a(f"s_cbranch_vccz L_h2_a")
        h2_issue(G2)
        h2_check(G3, 4)
        a(f"""s_bitcmp1_b32 s{sCnt}, 18
s_cbranch_scc1 L_h2_b
s_cbranch_vccnz L_h2
L_h2_b:""")
        h2_write(G3)
        a("s_branch L_h2_done\nL_h2_a:")
        h2_write(G2)
        a("L_h2_done:")
    set_flag(F_STAGE, vT1)
    stamp(8)
    stamp_val(12, sCnt)
    a(f"""s_cmp_lg_u32 s{sJ}, 0
s_cbranch_scc1 L_fin
v_mov_b32 v{vT0}, 0
s_mov_b32 s{sT}, {W_E}
s_mov_b64 exec, 1
buffer_store_dwordx2 {vr(hX+4,2)}, v{vT0}, {sr(SWS,4)}, s{sT} offen
s_mov_b64 exec, -1
L_fin:""")
    if stamps:
        a(f"""
s_load_dwordx2 s[16:17], s[0:1], 48
s_waitcnt lgkmcnt(0)
s_add_u32 s{SST}, s16, {STAMP_OFF}
s_addc_u32 s{SST+1}, s17, 0
s_mov_b32 s{SST+2}, {256*16*64}
s_mov_b32 s{SST+3}, 0x20000
s_lshl_b32 s{sT}, s2, 4
s_add_u32 s{sT}, s{sT}, s{sW}
s_lshl_b32 s{sT}, s{sT}, 6
v_lshlrev_b32 v{vT1}, 2, v{vL}
s_mov_b64 exec, 0xffff
buffer_store_dword v{vS}, v{vT1}, {sr(SST,4)}, s{sT} offen
""")
    a("L_end:\ns_endpgm")
    return a, k

def build(**kw):
    a, k = gen(**kw)
    txt = '.amdgcn_target "amdgcn-amd-amdhsa--gfx950"\n.text\n' + a.text()
    hdr = HEADER + f"; @launch grid=(256,1,1) block=(640,1,1) lds={LDS_BYTES}\n"
    return hdr + txt + descriptor(k, NVGPR, sgpr=80)

if __name__ == '__main__':
    V = eval(open(sys.argv[1]).read())
    for n, kw in V.items():
        open(n + '.s', 'w').write(build(**kw))
    print(' '.join(n + '.s' for n in V))
```

```python
import sys
from asmlib import *
from gen2 import NAME, HEADER, LOG2E, CMUL, EPS, STAMP_OFF

sW, sH, sJ = 3, 18, 19
SK, SOUT, SOH, SWS, SOM = 20, 32, 36, 40, 44
sBase, sT, sU, sOff, sCnt, sMode, sXcc = 48, 49, 50, 52, 53, 54, 55
sTag = 56
sTmp64 = 58
sStamp = 60
sStamp0 = 62
SST = 64
sProg, sNeed, sPo = 68, 69, 70
sEv = 72
WS_HEAD = 8192
W_KV, W_R, W_R2, W_E = 0, 4096, 4096 + 256, 4096 + 512
L_FL = 0
L_Z = 384
L_KQ = 512
L_V, L_OM, L_PHI, L_KVB = L_KQ + 65536, L_KQ + 131072, L_KQ + 135168, L_KQ + 139264
F_CNT, F_MODE, F_STAGE, F_PROG = 0, 1, 2, 3
LDS_BYTES = L_KVB + 4096
vL, vN, vG, vT0, vT1, vT2, vS = 1, 2, 3, 4, 5, 6, 7
vFA = 8
vFL = 10
vF = 16
vPub, vM0, vM1, vTR0, vTR1, vPA = 20, 21, 22, 23, 24, 25
vPhi, vZ = 26, 28
vB = 30
TA, TB = 34, 38
vP, vGm, vD2, vRcp = 42, 46, 50, 54
vOA, vZA = 58, 59
OM, FR, KVB, PK = 64, 96, 128, 160
NVGPR = 168
SPIN = 1 << 16
LSPIN = 1 << 20

def gen(N=20, stamps=False, lf='nt', sf='nt', gf='sc1', force_slow=False, name=None, fill='nt', fillwide=True,
        spread=7, rdyat=12, zat=32, h1at=None, prefetch='helper', pfmask=15, vsplit=28, h2wait=True, bar_at=None, touch=True, NQ=None, fillmode='start', zat2=None, dual=False, h2mode=1, lateload=False, stag=None, gateA=None, gateB=None, gbit=3, onex8=False, st_first=False, compact=False, tlb=None, h1b=None, lfill=False, earlybar=False):
    a = Asm()
    k = name or NAME + '_kernel'
    uid = [0]
    def stamp(i):
        if stamps:
            a(f"s_memrealtime s[{sStamp}:{sStamp+1}]\ns_waitcnt lgkmcnt(0)\nv_writelane_b32 v{vS}, s{sStamp}, {i}")
    def stamp_val(i, s):
        if stamps:
            a(f"v_writelane_b32 v{vS}, s{s}, {i}")
    def wait_flags(conds):
        uid[0] += 1
        lab = f"L_wf{uid[0]}"
        a(f"s_mov_b32 s{sCnt}, 0\n{lab}:")
        if len(conds) == 1:
            w = conds[0][0]
            a(f"ds_read_b32 v{vFL+w}, v{vFA} offset:{4*w}")
        else:
            a(f"ds_read_b128 {vr(vFL,4)}, v{vFA}")
        a(f"s_add_u32 s{sCnt}, s{sCnt}, 1\ns_bitcmp1_b32 s{sCnt}, 23\ns_cbranch_scc1 {lab}_x\ns_waitcnt lgkmcnt(0)")
        for w, m in conds:
            a(f"v_cmp_gt_i32 vcc, {m}, v{vFL+w}\ns_cbranch_vccnz {lab}")
        a(f"{lab}_x:")
    def set_flag(word, vreg, op='ds_write_b32'):
        a(f"s_mov_b64 exec, 1\n{op} v{vFA}, v{vreg} offset:{4*word}\ns_mov_b64 exec, -1")
    def store2(text):
        uid[0] += 1
        lab = f"L_st{uid[0]}"
        lines = text.strip().split('\n')
        a(f"s_cmp_eq_u32 s{sMode}, 1\ns_cbranch_scc0 {lab}_s")
        for ln in lines: a(ln)
        a(f"s_branch {lab}_d\n{lab}_s:")
        for ln in lines: a(ln + ' sc1')
        a(f"{lab}_d:")
    a(f""".globl {k}
.p2align 8
.type {k},@function
{k}:""")
    if stamps:
        a(f"s_memrealtime s[{sStamp0}:{sStamp0+1}]\nv_mov_b32 v{vS}, 0")
    lA, lP = 16, 20
    lag = (N - 1) // 4
    if bar_at is None:
        bar_at = lag + 1
    def code_prefetch(dst):
        a(f"""; pull this kernel's code into L2 (one lane per 128-byte line)
s_and_b32 s{sT}, s{sJ}, {pfmask}
s_cbranch_scc1 L_nopf
s_getpc_b64 s[{sTmp64}:{sTmp64+1}]
L_pc:
s_sub_u32 s{sTmp64}, s{sTmp64}, L_pc-{k}
s_subb_u32 s{sTmp64+1}, s{sTmp64+1}, 0
v_lshlrev_b32 v{vT2}, 7, v{vL}
v_min_u32 v{vT0}, L_end-{k}, v{vT2}
global_load_dword v{dst}, v{vT0}, s[{sTmp64}:{sTmp64+1}]
L_nopf:""")
    if onex8:
        a(f"s_load_dwordx8 s[4:11], s[0:1], 0")
    elif not lateload:
        a(f"s_load_dwordx2 s[{SK}:{SK+1}], s[0:1], 8")
    else:
        a(f"""v_cmp_gt_u32 vcc, 64, v0
s_cbranch_vccz L_nold
s_load_dwordx2 s[{SK}:{SK+1}], s[0:1], 8
s_load_dwordx8 s[4:11], s[0:1], 0
L_nold:""")
    a(f"""
v_readfirstlane_b32 s{sW}, v0
s_cmpk_ge_u32 s2, 256
s_cbranch_scc1 L_end
s_and_b32 s{sH}, s2, 15
s_lshr_b32 s{sJ}, s2, 4
s_lshl_b32 s{sT}, s{sH}, 20
s_lshl_b32 s{sU}, s{sJ}, 16
s_or_b32 s{sBase}, s{sT}, s{sU}
v_and_b32 v{vL}, 63, v0
v_mov_b32 v{vFA}, 0
v_lshlrev_b32 v{lP}, 2, v{vL}
s_cmp_eq_u32 s{sW}, 0
s_cbranch_scc1 L_loader
ds_write_b32 v{lP}, v{vFA}          ; flags start at zero""")
    if prefetch == 'pre':
        a(f"""s_and_b32 s{sT}, s{sJ}, {pfmask}
s_add_u32 s{sT}, s{sT}, s{sW}
s_cmpk_lg_u32 s{sT}, 128
s_cbranch_scc1 L_nopf
s_getpc_b64 s[{sTmp64}:{sTmp64+1}]
L_pc:
v_lshlrev_b32 v{vT2}, 7, v{vL}
v_min_u32 v{vT0}, L_end-L_pc, v{vT2}
global_load_dword v{PK}, v{vT0}, s[{sTmp64}:{sTmp64+1}]
L_nopf:""")
    a(f"""s_waitcnt lgkmcnt(0)
s_barrier                     ; B0
s_branch L_notloader
L_loader:
{'' if lateload or onex8 else 's_load_dwordx8 s[4:11], s[0:1], 0'}
{'s_load_dwordx2 s[12:13], s[0:1], 32' if lfill else ''}
v_lshrrev_b32 v{vT0}, 4, v0
v_and_b32 v{vT0}, 2, v{vT0}
v_xor_b32 v{vT0}, v{vT0}, v0
v_lshlrev_b32 v{lA}, 4, v{vT0}
s_mov_b32 s{SK+2}, 0x1000000
s_mov_b32 s{SK+3}, 0x20000
v_xor_b32 v{lA+1}, 64, v{lA}
v_xor_b32 v{lA+2}, 0x80, v{lA}
v_xor_b32 v{lA+3}, 0xc0, v{lA}
s_movk_i32 m0, {L_KQ}
s_mov_b32 s{sOff}, s{sBase}
s_movk_i32 s{sProg}, {-lag}
s_mov_b32 s{sEv}, {(1 << bar_at) | (1 << 16)}
s_mov_b32 s{sEv+1}, 0x10001
{'s_barrier                     ; B0: flags initialised' if earlybar else ''}
s_waitcnt lgkmcnt(0)""")
    if onex8:
        a(f"s_mov_b32 s{SK}, s6\ns_mov_b32 s{SK+1}, s7")
    if st_first:
        a(f"s_memrealtime s[{sTag}:{sTag+1}]")
    if stamps:
        a(f"v_writelane_b32 v{vS}, s{sStamp0}, 0")
    a("L_ld:")
    for t in range(4):
        if t == (N - 1) % 4:
            a(f"""v_mov_b32 v{vFL}, s{sProg}
s_cmp_lt_i32 s{sProg}, 1
s_waitcnt vmcnt({N-1})
s_cbranch_scc1 L_ld_noprog
ds_write_b32 v{lP}, v{vFL} offset:{4*F_PROG}
L_ld_noprog:""")
        else:
            a(f"s_waitcnt vmcnt({N-1})")
        a(f"buffer_load_dwordx4 v{lA+t}, {sr(SK,4)}, s{sOff} offen offset:{t*1024} {lf} lds")
    a(f"""s_add_u32 s{sT}, s{sProg}, {lag + 1}
s_add_u32 s{sOff}, s{sOff}, 4096
s_add_u32 m0, m0, 4096
s_add_u32 s{sProg}, s{sProg}, 1
s_bitcmp1_b64 s[{sEv}:{sEv+1}], s{sT}
s_cbranch_scc0 L_ld
s_cmp_eq_u32 s{sT}, 16
s_cbranch_scc1 L_ld_toV
s_cmp_eq_u32 s{sT}, 32
s_cbranch_scc1 L_ld_toQ
s_cmp_eq_u32 s{sT}, 48
s_cbranch_scc1 L_ld_drain
s_setprio 2
s_mov_b32 s{SOM}, s10
s_mov_b32 s{SOM+1}, s11
s_mov_b32 s{SOM+2}, 4096
s_mov_b32 s{SOM+3}, 0x20000
s_mov_b32 s{sU}, m0
s_mov_b32 m0, {L_OM}
s_nop 0""")
    for t in range(4):
        a(f"buffer_load_dwordx4 v{lA+t}, {sr(SOM,4)}, 0 offen offset:{t*1024} lds")
    if lfill:
        a(f"""; line fill of this workgroup's partial-sum slot (one lane per 128-byte line)
s_and_b32 s{sT}, s{sJ}, {spread}
s_lshl_b32 s{sT}, s{sT}, 13
s_add_u32 s{sT}, s{sT}, s{sBase}
v_lshl_add_u32 v{vT1}, v0, 7, s{sT}
global_load_dword v{vT2}, v{vT1}, s[12:13] {fill}""")
    if tlb == 'vec':
        a(f"""; touch this workgroup's V and Q pages so that their translations are ready when the streams get there
v_mov_b32 v{vT1}, s{sBase}
s_mov_b64 exec, 1
global_load_dword v{vT2}, v{vT1}, s[8:9]
global_load_dword v{vT0}, v{vT1}, s[4:5]
s_mov_b64 exec, -1""")
    elif tlb == 'sca':
        a(f"""s_load_dword s{sTag}, s[8:9], s{sBase}
s_load_dword s{sTag+1}, s[4:5], s{sBase}""")
    a(f"""s_mov_b32 m0, s{sU}
{'' if earlybar else 's_barrier                     ; B0: flags initialised'}""")
    stamp(1)
    if st_first:
        a(f"v_writelane_b32 v{vS}, s{sTag}, 1")
    a(f"""s_branch L_ld
L_ld_toV:""")
    stamp(2)
    a(f"""s_mov_b32 s{SK}, s8
s_mov_b32 s{SK+1}, s9
s_mov_b32 s{sOff}, s{sBase}
s_branch L_ld
L_ld_toQ:""")
    stamp(3)
    a(f"""s_mov_b32 s{SK}, s4
s_mov_b32 s{SK+1}, s5
s_mov_b32 s{sOff}, s{sBase}
s_movk_i32 m0, {L_KQ}""")
    wait_flags([(F_CNT, 8)])
    lagq = lag
    def qloop(tag, NQ, first=32, last=48):
        lagq = (NQ - 1) // 4
        a(f"""s_movk_i32 s{sProg}, {first - lagq}
L_ldq{tag}:
s_waitcnt vmcnt({NQ-1})
buffer_load_dwordx4 v{lA}, {sr(SK,4)}, s{sOff} offen {lf} lds
s_waitcnt vmcnt({NQ-1})
buffer_load_dwordx4 v{lA+1}, {sr(SK,4)}, s{sOff} offen offset:1024 {lf} lds
s_waitcnt vmcnt({NQ-1})
buffer_load_dwordx4 v{lA+2}, {sr(SK,4)}, s{sOff} offen offset:2048 {lf} lds
v_mov_b32 v{vFL}, s{sProg}
s_waitcnt vmcnt({NQ-1})
ds_max_i32 v{lP}, v{vFL} offset:{4*F_PROG}
buffer_load_dwordx4 v{lA+3}, {sr(SK,4)}, s{sOff} offen offset:3072 {lf} lds
s_add_u32 s{sOff}, s{sOff}, 4096
s_add_u32 m0, m0, 4096
s_add_u32 s{sProg}, s{sProg}, 1
s_cmp_lt_i32 s{sProg}, {last - lagq}
s_cbranch_scc1 L_ldq{tag}""")
        return lagq
    def drain_to(upto, lg):
        for done in range(upto - lg, upto + 1):
            a(f"v_mov_b32 v{vFL}, {done}\ns_waitcnt vmcnt({(upto-done)*4})\nds_max_i32 v{lP}, v{vFL} offset:{4*F_PROG}")
    if stag:
        NA, NB, pre, rel, preB = stag
        a(f"s_bitcmp1_b32 s2, {gbit}\ns_cbranch_scc1 L_qB")
        if pre:
            qloop('A0', N, 32, 32 + pre)
        drain_to(32 + pre, lag)
        wait_flags([(F_STAGE, rel)])
        qloop('A', NA, 32 + pre)
        a("s_branch L_ld_drain\nL_qB:")
        if preB:
            qloop('B0', N, 32, 32 + preB)
        qloop('B', NB, 32 + preB)
        lagq = (max(NA, NB) - 1) // 4
    elif NQ is None or NQ == N:
        a("s_branch L_ld")
    else:
        lagq = qloop('', NQ)
    a("L_ld_drain:")
    stamp(4)
    for done in range(48 - lagq + ((48 - lagq) & 1), 49, 2):
        a(f"v_mov_b32 v{vFL}, {done}\ns_waitcnt vmcnt({(48-done)*4})\nds_max_i32 v{lP}, v{vFL} offset:{4*F_PROG}")
    stamp(5)
    a("s_branch L_fin" if stamps else "s_endpgm")
    a(f"""L_notloader:
s_load_dwordx2 s[12:13], s[0:1], 32
s_load_dwordx2 s[16:17], s[0:1], 48
s_lshr_b32 s{sW}, s{sW}, 6
s_cmp_eq_u32 s{sW}, 1
s_cbranch_scc1 L_helper""")
    if prefetch == 'first':
        a(f"s_cmp_lg_u32 s{sW}, 2\ns_cbranch_scc1 L_nopf")
        code_prefetch(PK)
    a(f"""
v_and_b32 v{vN}, 15, v0
v_bfe_u32 v{vG}, v0, 4, 2
s_mov_b32 s{SOUT+2}, 65536
s_mov_b32 s{SOUT+3}, 0x20000
s_sub_u32 s{sW}, s{sW}, 2
s_lshl_b32 s{sNeed}, s{sW}, 1
s_add_u32 s{sNeed}, s{sNeed}, 2
v_and_b32 v{vT1}, 7, v{vN}
v_lshlrev_b32 v{vT0}, 1, v{vT1}
v_xor_b32 v{vT0}, v{vG}, v{vT0}
v_lshlrev_b32 v{vT0}, 4, v{vT0}
v_lshl_add_u32 v{vT2}, v{vN}, 9, v{vT0}
s_lshl_b32 s{sT}, s{sW}, 13
v_add_u32 v{vT2}, {L_KQ}, v{vT2}
v_add_u32 v{vF}, s{sT}, v{vT2}
v_xor_b32 v{vF+1}, 64, v{vF}
v_xor_b32 v{vF+2}, 0x80, v{vF}
v_xor_b32 v{vF+3}, 0xc0, v{vF}
v_lshl_add_u32 v{vT0}, v{vT1}, 9, v{vT0}
v_add_u32 v{vB}, {L_OM}, v{vT0}
v_xor_b32 v{vB+1}, 64, v{vB}
v_xor_b32 v{vB+2}, 0x80, v{vB}
v_xor_b32 v{vB+3}, 0xc0, v{vB}
v_lshlrev_b32 v{vT0}, 11, v{vG}
v_lshl_add_u32 v{vT0}, v{vN}, 4, v{vT0}
v_add_u32 v{vOA}, s{sT}, v{vT0}
v_lshlrev_b32 v{vT0}, 2, v{vG}
v_sub_u32 v{vT0}, v{vN}, v{vT0}
v_mov_b32 v{vT1}, 0xffff
v_mov_b32 v{vT2}, 0xffff0000
v_cmp_eq_u32 vcc, 0, v{vT0}
v_cmp_eq_u32 s[{sTmp64}:{sTmp64+1}], 1, v{vT0}
v_cndmask_b32 v{vM0}, 0, v{vT1}, vcc
v_cmp_eq_u32 vcc, 2, v{vT0}
v_cndmask_b32 v{vM0}, v{vM0}, v{vT2}, s[{sTmp64}:{sTmp64+1}]
v_cmp_eq_u32 s[{sTmp64}:{sTmp64+1}], 3, v{vT0}
v_cndmask_b32 v{vM1}, 0, v{vT1}, vcc
v_and_b32 v{TA}, 0x3e803e80, v{vM0}
v_cndmask_b32 v{vM1}, v{vM1}, v{vT2}, s[{sTmp64}:{sTmp64+1}]
v_and_b32 v{TA+1}, 0x3e803e80, v{vM1}
v_lshrrev_b32 v{vT0}, 2, v{vL}
v_and_b32 v{vT1}, 7, v{vT0}
s_lshl_b32 s{sT}, s{sW}, 1
v_xor_b32 v{vT1}, s{sT}, v{vT1}
v_lshlrev_b32 v{vT1}, 5, v{vT1}
v_lshl_add_u32 v{vTR0}, v{vT0}, 9, v{vT1}
v_and_b32 v{vT1}, 3, v{vL}
v_lshl_add_u32 v{vTR0}, v{vT1}, 3, v{vTR0}
v_add_u32 v{vTR0}, {L_V}, v{vTR0}
v_xor_b32 v{vTR1}, 32, v{vTR0}
v_lshlrev_b32 v{vT0}, 4, v{vL}
v_add_u32 v{vPA}, {L_PHI}, v{vT0}
s_and_b32 s{sU}, s{sJ}, {spread}
s_lshl_b32 s{sU}, s{sU}, 3
s_add_u32 s{sU}, s{sU}, s{sW}
s_lshl_b32 s{sU}, s{sU}, 10
v_add_u32 v{vPub}, s{sU}, v{vT0}
v_and_b32 v{vZA}, 1, v{vG}
v_lshlrev_b32 v{vZA}, 3, v{vZA}
v_add_u32 v{vZA}, {L_Z}, v{vZA}
v_cmp_gt_u32 s[{sTmp64}:{sTmp64+1}], 32, v{vL}
s_lshr_b32 s{sT}, s{sW}, 1
s_lshl_b32 s{sT}, s{sT}, 10
s_and_b32 s{sU}, s{sW}, 1
s_lshl_b32 s{sU}, s{sU}, 3
s_add_u32 s{sT}, s{sT}, s{sU}
v_add_u32 v{vT2}, s{sT}, v{vPA}
s_waitcnt lgkmcnt(0)
s_add_u32 s{SOUT}, s12, s{sBase}
s_addc_u32 s{SOUT+1}, s13, 0""")
    if stamps:
        a(f"v_writelane_b32 v{vS}, s{sStamp0}, 0")
    stamp(1)
    wait_flags([(F_PROG, bar_at + 1)])
    for u in range(8):
        a(f"ds_read_b128 {vr(OM+4*u,4)}, v{vB+(u&3)} offset:{256*(u>>2)}")
    a(f"""; B-fragment read addresses for the output phase
v_and_b32 v{vT0}, 1, v{vG}
v_lshlrev_b32 v{vT0}, 11, v{vT0}
v_lshl_add_u32 v{vT0}, v{vN}, 6, v{vT0}
v_lshrrev_b32 v{vT1}, 2, v{vN}
v_lshl_add_u32 v{vT0}, v{vT1}, 4, v{vT0}
v_add_u32 v{vB}, {L_KVB}, v{vT0}
v_xor_b32 v{vB+1}, 16, v{vB}
v_xor_b32 v{vB+2}, 32, v{vB}
v_xor_b32 v{vB+3}, 48, v{vB}
v_mov_b32 v{vT1}, 1""")
    wait_flags([(F_PROG, f"s{sNeed}")])
    stamp(2)
    def phi(isq):
        for u in range(8):
            a(f"ds_read_b128 {vr(FR+4*u,4)}, v{vF+(u&3)} offset:{256*(u>>2)}")
        gd, cc = (TB+2, TA+2) if isq else (TA+2, TB+2)
        a(f"v_mov_b32 v{cc}, 0xbd00bd00\nv_mov_b32 v{cc+1}, 0xbd00bd00")
        for u in range(8):
            a(f"s_waitcnt lgkmcnt({7-u})")
            c1 = '0' if u == 0 else vr(vP, 4)
            c2 = '0' if u == 0 else vr(vGm, 4)
            a(f"v_mfma_f32_16x16x32_bf16 {vr(vGm,4)}, {vr(FR+4*u,4)}, {vr(FR+4*u,4)}, {c2}")
            if isq:
                a(f"v_mfma_f32_16x16x32_bf16 {vr(vP,4)}, {vr(OM+4*u,4)}, {vr(FR+4*u,4)}, {c1}")
            else:
                a(f"v_mfma_f32_16x16x32_bf16 {vr(vP,4)}, {vr(FR+4*u,4)}, {vr(OM+4*u,4)}, {c1}")
        a(f"""
v_cvt_pk_bf16_f32 v{gd}, v{vGm}, v{vGm+1}
v_cvt_pk_bf16_f32 v{gd+1}, v{vGm+2}, v{vGm+3}
v_and_b32 v{gd}, v{gd}, v{vM0}
v_and_b32 v{gd+1}, v{gd+1}, v{vM1}
v_cvt_pk_bf16_f32 v{TB}, v{vP}, v{vP+1}
v_cvt_pk_bf16_f32 v{TB+1}, v{vP+2}, v{vP+3}
v_mfma_f32_16x16x32_bf16 {vr(vD2,4)}, {vr(TA,4)}, {vr(TB,4)}, 0
""")
        for op in (lambda r: f"v_cvt_pk_bf16_f32 v{r}, 0, v{r}",
                   lambda r: f"v_mul_f32 v{r}, {LOG2E}, v{r}",
                   lambda r: f"v_exp_f32 v{r}, v{r}",
                   lambda r: f"v_cvt_pk_bf16_f32 v{r}, 0, v{r}",
                   lambda r: f"v_mul_f32 v{r}, {CMUL}, v{r}",
                   lambda r: f"v_cvt_pk_bf16_f32 v{r}, 0, v{r}",
                   lambda r: f"v_add_f32 v{r}, {EPS}, v{r}"):
            for r in range(4):
                a(op(vD2 + r))
        a(f"""
v_cvt_pk_bf16_f32 v{vPhi}, v{vD2}, v{vD2+1}
v_cvt_pk_bf16_f32 v{vPhi+1}, v{vD2+2}, v{vD2+3}
""")
    phi(False)
    a(f"ds_write_b64 v{vT2}, {vr(vPhi,2)}")
    set_flag(F_CNT, vT1, 'ds_add_u32')
    a(f"s_add_u32 s{sNeed}, s{sNeed}, 32")
    stamp(3)
    AF, BF, D0, D1 = KVB, FR, vP, vGm
    def v_reads(s):
        for u in range(2):
            for hh in range(2):
                a(f"ds_read_b64_tr_b16 {vr(BF+8*s+4*u+2*hh,2)}, v{vTR0+u} offset:{(32*s+16*hh)*512}")
    def v_mf(s):
        c = lambda D: '0' if s == 0 else vr(D, 4)
        a(f"""v_mfma_f32_16x16x32_bf16 {vr(D0,4)}, {vr(AF+4*s,4)}, {vr(BF+8*s,4)}, {c(D0)}
v_mfma_f32_16x16x32_bf16 {vr(D1,4)}, {vr(AF+4*s,4)}, {vr(BF+8*s+4,4)}, {c(D1)}""")
    wait_flags([(F_PROG, vsplit), (F_CNT, 8), (F_MODE, 1)])
    stamp(4)
    a(f"v_readfirstlane_b32 s{sMode}, v{vFL+F_MODE}\ns_waitcnt vmcnt(0)                  ; code prefetch (wave 2) has long landed")
    for s in range(4):
        a(f"ds_read_b128 {vr(AF+4*s,4)}, v{vPA} offset:{1024*s}")
    v_reads(0); v_reads(1)
    a("s_waitcnt lgkmcnt(4)"); v_mf(0)
    v_reads(2)
    a("s_waitcnt lgkmcnt(4)"); v_mf(1)
    a("s_waitcnt lgkmcnt(0)"); v_mf(2)
    wait_flags([(F_PROG, 32)])
    stamp(5)
    v_reads(3)
    a(f"s_waitcnt lgkmcnt(2)\nv_mfma_f32_16x16x32_bf16 {vr(D0,4)}, {vr(AF+12,4)}, {vr(BF+24,4)}, {vr(D0,4)}")
    a(f"s_waitcnt lgkmcnt(0)\nv_mfma_f32_16x16x32_bf16 {vr(D1,4)}, {vr(AF+12,4)}, {vr(BF+28,4)}, {vr(D1,4)}")
    for r in range(4):
        a(f"v_cndmask_b32 v{vD2+r}, v{D1+r}, v{D0+r}, s[{sTmp64}:{sTmp64+1}]")
    for r in range(4):
        a(f"v_min_u32 v{vD2+r}, -2, v{vD2+r}")
    store2(f"buffer_store_dwordx4 {vr(vD2,4)}, v{vPub}, {sr(SOUT,4)}, 0 offen")
    if h1at is not None:
        set_flag(F_CNT, vT1, 'ds_add_u32')
    stamp(6)
    wait_flags([(F_PROG, f"s{sNeed}")])
    stamp(7)
    phi(True)
    a(f"""v_cndmask_b32 v{vPhi}, 0, v{vPhi}, s[{sTmp64}:{sTmp64+1}]
v_cndmask_b32 v{vPhi+1}, 0, v{vPhi+1}, s[{sTmp64}:{sTmp64+1}]""")
    stamp(8)
    wait_flags([(F_STAGE, 1)])
    a(f"""ds_read_b64 {vr(vZ,2)}, v{vZA}
s_waitcnt lgkmcnt(0)
v_mfma_f32_16x16x16_bf16 {vr(vD2,4)}, {vr(vPhi,2)}, {vr(vZ,2)}, 0""")
    for op in (lambda r: f"v_cvt_pk_bf16_f32 v{vRcp+r}, 0, v{vD2+r}",
               lambda r: f"v_add_f32 v{vRcp+r}, {EPS}, v{vRcp+r}",
               lambda r: f"v_cvt_pk_bf16_f32 v{vRcp+r}, 0, v{vRcp+r}",
               lambda r: f"v_rcp_f32 v{vRcp+r}, v{vRcp+r}"):
        for r in range(4):
            a(op(r))
    stamp(9)
    if gateA or gateB:
        a(f"s_bitcmp1_b32 s2, {gbit}\ns_cselect_b32 s{sNeed}, {gateB or 0}, {gateA or 0}")
        wait_flags([(F_STAGE, 3), (F_PROG, f"s{sNeed}")])
    else:
        wait_flags([(F_STAGE, 3)])
    stamp(10)
    for i in range(8):
        a(f"ds_read_b128 {vr(KVB+4*i,4)}, v{vB+(i&3)} offset:{1024*(i>>2)}")
    ACC = OM
    def out_mf(hf, c):
        i = hf*4 + (c >> 1)
        if c % 2 == 0:
            a(f"s_waitcnt lgkmcnt({7-i})")
        a(f"v_mfma_f32_16x16x16_bf16 {vr(ACC+32*hf+4*c,4)}, {vr(vPhi,2)}, {vr(KVB+4*i+2*(c&1),2)}, 0")
    def scale(x, r):
        a(f"v_cvt_pk_bf16_f32 v{x}, 0, v{x}")
        a(f"v_cvt_pk_bf16_f32 v{x+1}, 0, v{x+1}")
        a(f"v_pk_mul_f32 {vr(x,2)}, {vr(x,2)}, {vr(vRcp+r,2)}")
    for c in range(8):
        out_mf(0, c)
        if c >= 3:
            scale(ACC + 4*(c-3), 0)
    for c in range(5, 8):
        out_mf(1, c - 5)
        scale(ACC + 4*c, 0)
    cnt = 0
    for hf in range(2):
        for r in range(4):
            regs = [ACC+32*hf+4*c+r for c in range(8)]
            if r % 2 == 0 and (hf, r) != (0, 0):
                for ci, x in enumerate(regs):
                    scale(x, r)
                    if (hf, r) == (0, 2) and ci < 5:
                        out_mf(1, 3 + ci)
            pkr = PK + 4*(cnt % 2); cnt += 1
            for c2 in range(4):
                a(f"v_cvt_pk_bf16_f32 v{pkr+c2}, v{regs[2*c2]}, v{regs[2*c2+1]}")
            a(f"buffer_store_dwordx4 {vr(pkr,4)}, v{vOA}, {sr(SOUT,4)}, 0 offen offset:{r*512+hf*256} {sf}")
            if cnt == 1:
                stamp(11)
    stamp(12)
    if stamps:
        a("s_waitcnt vmcnt(0)")
        stamp(13)
        a(f"s_add_u32 s{sW}, s{sW}, 2\ns_branch L_fin")
    else:
        a("s_endpgm")
    hA, hC, hZ, hR, hK = 16, 20, 21, 22, 23
    hONE, hAF, hD, hG = 24, 28, 44, 64
    hX = 48
    a(f"""L_helper:
s_setprio 3""")
    if prefetch == 'helper':
        code_prefetch(hG + 31)
    a(f"""s_mul_i32 s{sT}, s{sH}, {WS_HEAD}
s_waitcnt lgkmcnt(0)
s_add_u32 s{SWS}, s16, s{sT}
s_addc_u32 s{SWS+1}, s17, 0
s_load_dwordx2 s[{sTag}:{sTag+1}], s[{SWS}:{SWS+1}], {W_E}""")
    if stamps:
        a(f"v_writelane_b32 v{vS}, s{sStamp0}, 0")
    a(f"""s_mov_b32 s{SWS+2}, {WS_HEAD}
s_mov_b32 s{SWS+3}, 0x20000
s_add_u32 s{SOUT}, s12, s{sBase}
s_addc_u32 s{SOUT+1}, s13, 0
s_mov_b32 s{SOUT+2}, 65536
s_mov_b32 s{SOUT+3}, 0x20000
s_lshl_b32 s{sT}, s{sH}, 20
s_add_u32 s{SOH}, s12, s{sT}
s_addc_u32 s{SOH+1}, s13, 0
s_mov_b32 s{SOH+2}, 0x100000
s_mov_b32 s{SOH+3}, 0x20000
s_getreg_b32 s{sXcc}, hwreg(HW_REG_XCC_ID, 0, 4)
v_and_b32 v{vN}, 15, v0
v_bfe_u32 v{vG}, v0, 4, 2
v_mov_b32 v{hONE}, -1
v_mov_b32 v{hONE+1}, -1
v_mov_b32 v{hONE+2}, -1
v_mov_b32 v{hONE+3}, -1
v_lshlrev_b32 v{hC}, 4, v{vL}
s_and_b32 s{sPo}, s{sJ}, {spread}
s_add_u32 s{sU}, s{sPo}, 1
s_and_b32 s{sU}, s{sU}, 7
s_lshl_b32 s{sU}, s{sU}, 13
s_lshl_b32 s{sPo}, s{sPo}, 13
v_add_u32 v{hX}, 4096, v{hC}
v_and_b32 v{vT0}, 0x2f, v{vL}
v_cmp_eq_u32 vcc, 0, v{vT0}
v_lshlrev_b32 v{vT0}, 4, v{vG}
v_add_u32 v{vT0}, s{sU}, v{vT0}
v_mov_b32 v{vT1}, 0x7fffff00
v_cndmask_b32 v{hZ}, v{vT1}, v{vT0}, vcc
v_lshrrev_b32 v{vT0}, 3, v{vN}
s_lshl_b32 s{sT}, s{sJ}, 1
v_add_u32 v{vT0}, s{sT}, v{vT0}
v_bfe_u32 v{vT2}, v{vT0}, 2, 2
v_lshlrev_b32 v{hK}, 6, v{vT0}
v_bfe_u32 v{vT0}, v{vN}, 1, 2
v_xor_b32 v{vT0}, v{vT0}, v{vT2}
v_lshl_add_u32 v{hK}, v{vT0}, 4, v{hK}
v_and_b32 v{vT0}, 1, v{vN}
v_lshl_add_u32 v{hK}, v{vT0}, 3, v{hK}
v_lshl_add_u32 v{hK}, v{vG}, 11, v{hK}
v_cmp_gt_u32 vcc, 32, v{vL}
v_lshlrev_b32 v{hR}, 3, v{vN}
v_lshlrev_b32 v{vT2}, 7, v{vL}
v_cndmask_b32 v{hK}, v{vT1}, v{hK}, vcc
""")
    def big_fill():
        if fillwide:
            for t in range(8):
                a(f"buffer_load_dwordx4 {vr(hG+4*(t&3),4)}, v{hC if t < 4 else hF}, {sr(SOUT,4)}, s{sPo} offen offset:{(t&3)*1024} {fill}")
        else:
            a(f"buffer_load_dword v{hG}, v{hF}, {sr(SOUT,4)}, s{sPo} offen {fill}")
    hF = 56
    a(f"v_mov_b32 v{hF}, v{hX if fillwide else vT2}")
    if fillmode == 'start' and not lfill:
        big_fill()
    a(f"buffer_load_dword v{hAF}, v{hZ}, {sr(SOUT,4)}, 0 offen {fill}")
    a(f"buffer_load_dword v{hAF+1}, v{hK}, {sr(SWS,4)}, 0 offen offset:{W_KV} {fill}")
    def clear(fl):
        for t in range(8):
            a(f"buffer_store_dwordx4 {vr(hONE,4)}, v{hC if t < 4 else hX}, {sr(SOUT,4)}, s{sPo} offen offset:{(t&3)*1024} {fl}")
        a(f"buffer_store_dwordx4 {vr(hONE,4)}, v{hZ}, {sr(SOUT,4)}, 0 offen {fl}")
        a(f"buffer_store_dwordx2 {vr(hONE,2)}, v{hK}, {sr(SWS,4)}, 0 offen offset:{W_KV} {fl}")
    def ready(off):
        a(f"""s_lshl_b32 s{sT}, s{sJ}, 3
s_add_u32 s{sT}, s{sT}, {off}
v_mov_b32 v{vT0}, 0
s_waitcnt vmcnt(0)
s_mov_b64 exec, 1
buffer_store_dwordx2 {vr(hX+4,2)}, v{vT0}, {sr(SWS,4)}, s{sT} offen sc1
s_mov_b64 exec, -1""")
    def wait_ready(off, lab):
        a(f"""s_mov_b32 s{sCnt}, 0
s_mov_b32 s{sT}, {off}
{lab}:
buffer_load_dwordx2 {vr(hG,2)}, v{hR}, {sr(SWS,4)}, s{sT} offen sc1
s_add_u32 s{sCnt}, s{sCnt}, 1
s_waitcnt vmcnt(0)
v_and_b32 v{hG+2}, 15, v{hG}
v_and_b32 v{hG}, -16, v{hG}
v_cmp_ne_u64 vcc, s[{sTag}:{sTag+1}], {vr(hG,2)}
s_bitcmp1_b32 s{sCnt}, 18
s_cbranch_scc1 {lab}_done
s_cbranch_vccnz {lab}
{lab}_done:""")
    clear('')
    a(f"""s_waitcnt lgkmcnt(0)
s_add_u32 s{sTag}, s{sTag}, 16
s_addc_u32 s{sTag+1}, s{sTag+1}, 0
s_and_b32 s{sTag}, s{sTag}, -16
s_or_b32 s{sT}, s{sTag}, s{sXcc}
v_mov_b32 v{hX+4}, s{sT}
v_mov_b32 v{hX+5}, s{sTag+1}""")
    ready(W_R)
    stamp(1)
    a(f"""; hop-1 gather address: hi*(65536+slot) + j*512 + (l&31)*16 ; z gather: p*65536 + slot(p+1) + g2*16
v_lshrrev_b32 v{vT1}, 5, v{vL}
v_mul_u32_u24 v{hA}, {65536 + 8192*(spread & 1)}, v{vT1}
v_and_b32 v{vT1}, 31, v{vL}
v_lshl_add_u32 v{hA}, v{vT1}, 4, v{hA}
s_lshl_b32 s{sT}, s{sJ}, 9
v_add_u32 v{hA}, s{sT}, v{hA}
v_and_b32 v{vT1}, 1, v{vG}
v_lshlrev_b32 v{hA+2}, 3, v{vT1}
v_add_u32 v{hA+2}, {L_Z}, v{hA+2}
v_lshlrev_b32 v{vT1}, 4, v{vT1}
v_lshl_add_u32 v{hA+1}, v{vN}, 16, v{vT1}
v_and_b32 v{vT1}, {spread}, v{vN}
v_add_u32 v{vT1}, 1, v{vT1}
v_and_b32 v{vT1}, 7, v{vT1}
v_lshl_add_u32 v{hA+1}, v{vT1}, 13, v{hA+1}
v_add_u32 v{hA+3}, {L_KVB}, v{hC}""")
    hK2 = 57
    if dual:
        a(f"""; pair mode: gather 1 KiB (slices 2i, 2i+1) from every partial, publish both slices
s_lshr_b32 s{sT}, s{sJ}, 1
s_lshl_b32 s{sU}, s{sT}, 10
v_add_u32 v{hA}, s{sU}, v{hC}
v_lshrrev_b32 v{vT0}, 5, v{vL}
v_lshlrev_b32 v{vT0}, 1, v{vT0}
v_lshrrev_b32 v{vT1}, 3, v{vN}
v_add_u32 v{vT0}, v{vT0}, v{vT1}
s_lshl_b32 s{sU}, s{sT}, 2
v_add_u32 v{vT0}, s{sU}, v{vT0}
v_lshlrev_b32 v{hK2}, 6, v{vT0}
v_and_b32 v{vT1}, 7, v{vN}
v_lshlrev_b32 v{vT1}, 3, v{vT1}
s_and_b32 s{sT}, s{sT}, 3
s_lshl_b32 s{sT}, s{sT}, 4
v_xor_b32 v{vT1}, s{sT}, v{vT1}
v_add_u32 v{hK2}, v{hK2}, v{vT1}
v_and_b32 v{vT1}, 1, v{vG}
v_lshl_add_u32 v{hK2}, v{vT1}, 11, v{hK2}""")
    wait_flags([(F_PROG, rdyat)])
    stamp(2)
    wait_ready(W_R, 'L_rdy1')
    stamp(3)
    stamp_val(13, sCnt)
    a(f"""v_cmp_ne_u32 vcc, s{sXcc}, v{hG+2}
s_mov_b32 s{sMode}, 1""")
    if not force_slow:
        a("s_cbranch_vccz L_mode_done")
    a(f"s_mov_b32 s{sMode}, 2")
    clear('sc1')
    ready(W_R2)
    wait_ready(W_R2, 'L_rdy2')
    a(f"""L_mode_done:
v_mov_b32 v{vT1}, s{sMode}""")
    set_flag(F_MODE, vT1)
    a(f"""v_add_u32 v{vT0}, {L_PHI}, v{hC}
v_mov_b32 v{hONE}, 0x3f803f80
v_mov_b32 v{hONE+1}, 0x3f803f80
v_mov_b32 v{hONE+2}, 0x3f803f80
v_mov_b32 v{hONE+3}, 0x3f803f80""")
    wait_flags([(F_CNT, 8)])
    stamp(4)
    for s in range(4):
        a(f"ds_read_b128 {vr(hAF+4*s,4)}, v{vT0} offset:{1024*s}")
    for s in range(4):
        a(f"s_waitcnt lgkmcnt({3-s})\nv_mfma_f32_16x16x32_bf16 {vr(hD,4)}, {vr(hAF+4*s,4)}, {vr(hONE,4)}, {'0' if s == 0 else vr(hD,4)}")
    for r in range(4):
        a(f"v_min_u32 v{hD+r}, -2, v{hD+r}")
    store2(f"buffer_store_dwordx4 {vr(hD,4)}, v{hZ}, {sr(SOUT,4)}, 0 offen")
    wait_flags([(F_PROG, zat)])
    stamp(5)
    a(f"""s_mov_b32 s{sCnt}, 0
L_zg:
buffer_load_dwordx4 {vr(hX,4)}, v{hA+1}, {sr(SOH,4)}, 0 offen {gf}
s_add_u32 s{sCnt}, s{sCnt}, 1
s_waitcnt vmcnt(0)
v_max3_u32 v{vT0}, v{hX}, v{hX+1}, v{hX+2}
v_max_u32 v{vT0}, v{vT0}, v{hX+3}
v_cmp_eq_u32 vcc, -1, v{vT0}
s_bitcmp1_b32 s{sCnt}, 18
s_cbranch_scc1 L_zg_done
s_cbranch_vccnz L_zg
L_zg_done:""")
    stamp_val(14, sCnt)
    def h1_issue(G=None):
        G = hG if G is None else G
        for i in range(16 if dual else 8):
            a(f"s_mov_b32 s{sT}, {i*0x10000 + (i & spread)*8192 if dual else i*0x20000 + ((2*i) & spread)*8192}")
            a(f"buffer_load_dwordx4 {vr(G+4*i,4)}, v{hA}, {sr(SOH,4)}, s{sT} offen {gf}")
    def z_reduce():
        for sh in (8, 4, 2, 1):
            for r in range(4):
                a(f"v_add_f32_dpp v{hX+r}, v{hX+r}, v{hX+r} row_ror:{sh} row_mask:0xf bank_mask:0xf")
        a(f"""v_cvt_pk_bf16_f32 v{hX}, v{hX}, v{hX+1}
v_cvt_pk_bf16_f32 v{hX+1}, v{hX+2}, v{hX+3}
v_mov_b32 v{vT1}, 1
s_mov_b64 exec, 0x10001
ds_write_b64 v{hA+2}, {vr(hX,2)}
ds_write_b32 v{vFA}, v{vT1} offset:{4*F_STAGE}
s_mov_b64 exec, -1""")
    if h1at is None:
        stamp(6)
        h1_issue()
        z_reduce()
        if h1b:
            HB = hG + 32
            wait_flags([(F_PROG, h1b)])
            h1_issue(HB)
            a(f"s_mov_b32 s{sCnt}, 1")
            for i in range(8):
                a(f"s_waitcnt vmcnt({15-i})")
                b = hG + 4*i
                if i == 0:
                    a(f"v_max3_u32 v{vT0}, v{b}, v{b+1}, v{b+2}\nv_max_u32 v{vT0}, v{vT0}, v{b+3}")
                else:
                    a(f"v_max3_u32 v{vT0}, v{vT0}, v{b}, v{b+1}\nv_max3_u32 v{vT0}, v{vT0}, v{b+2}, v{b+3}")
                    a(f"v_pk_add_f32 {vr(hG,2)}, {vr(hG,2)}, {vr(b,2)}\nv_pk_add_f32 {vr(hG+2,2)}, {vr(hG+2,2)}, {vr(b+2,2)}")
            a(f"v_cmp_eq_u32 vcc, -1, v{vT0}")
            for r in range(4):
                a(f"v_mov_b32 v{hD+r}, v{hG+r}")
            a("s_cbranch_vccz L_h1_done\ns_waitcnt vmcnt(0)")
            for r in range(32):
                a(f"v_mov_b32 v{hG+r}, v{HB+r}")
            a("s_branch L_h1_check\nL_h1:")
        else:
            a(f"s_mov_b32 s{sCnt}, 0\ns_branch L_h1_check\nL_h1:")
    else:
        z_reduce()
        if fillmode == 'afterpub':
            wait_flags([(F_CNT, 16)])
            big_fill()
        if h1at == 0:
            a("s_waitcnt vmcnt(0)")
        else:
            wait_flags([(F_CNT, 16), (F_PROG, h1at)])
        stamp(6)
        a(f"s_mov_b32 s{sCnt}, 0\nL_h1:")
    h1_issue()
    a(f"L_h1_check:\ns_add_u32 s{sCnt}, s{sCnt}, 1")
    n1 = 16 if dual else 8
    for i in range(n1):
        a(f"s_waitcnt vmcnt({n1-1-i})")
        b = hG + 4*i
        if i == 0:
            a(f"v_max3_u32 v{vT0}, v{b}, v{b+1}, v{b+2}\nv_max_u32 v{vT0}, v{vT0}, v{b+3}")
        else:
            a(f"v_max3_u32 v{vT0}, v{vT0}, v{b}, v{b+1}\nv_max3_u32 v{vT0}, v{vT0}, v{b+2}, v{b+3}")
            a(f"v_pk_add_f32 {vr(hG,2)}, {vr(hG,2)}, {vr(b,2)}\nv_pk_add_f32 {vr(hG+2,2)}, {vr(hG+2,2)}, {vr(b+2,2)}")
    a(f"""v_cmp_eq_u32 vcc, -1, v{vT0}""")
    if dual:
        a(f"""v_cvt_pk_bf16_f32 v{hD}, v{hG}, v{hG+1}
v_cvt_pk_bf16_f32 v{hD+1}, v{hG+2}, v{hG+3}
v_min_u32 v{hD}, -2, v{hD}
v_min_u32 v{hD+1}, -2, v{hD+1}""")
    else:
        for r in range(4):
            a(f"v_mov_b32 v{hD+r}, v{hG+r}")
    a(f"""s_bitcmp1_b32 s{sCnt}, 18
s_cbranch_scc1 L_h1_done
s_cbranch_vccnz L_h1
L_h1_done:""")
    if dual:
        store2(f"buffer_store_dwordx2 {vr(hD,2)}, v{hK2}, {sr(SWS,4)}, 0 offen offset:{W_KV}")
    else:
        for r in range(4):
            a(f"v_permlane32_swap_b32 v{hG+r}, v{hD+r}")
        a(f"""v_pk_add_f32 {vr(hG,2)}, {vr(hG,2)}, {vr(hD,2)}
v_pk_add_f32 {vr(hG+2,2)}, {vr(hG+2,2)}, {vr(hD+2,2)}
v_cvt_pk_bf16_f32 v{hG+8}, v{hG}, v{hG+1}
v_cvt_pk_bf16_f32 v{hG+9}, v{hG+2}, v{hG+3}
v_min_u32 v{hG+8}, -2, v{hG+8}
v_min_u32 v{hG+9}, -2, v{hG+9}""")
        store2(f"buffer_store_dwordx2 {vr(hG+8,2)}, v{hK}, {sr(SWS,4)}, 0 offen offset:{W_KV}")
    if stag:
        a(f"v_mov_b32 v{vT1}, 2")
        set_flag(F_STAGE, vT1)
    stamp(7)
    stamp_val(15, sCnt)
    G2 = hG + 16
    a(f"s_mov_b32 s{sCnt}, 0\nv_mov_b32 v{vT1}, 3")
    if h2wait:
        a("s_waitcnt vmcnt(0)")
    def h2_issue(G):
        for i in range(4):
            a(f"buffer_load_dwordx4 {vr(G+4*i,4)}, v{hC}, {sr(SWS,4)}, 0 offen offset:{W_KV+1024*i} {gf}")
    def h2_check(G, pending):
        for i in range(4):
            b = G + 4*i
            a(f"s_waitcnt vmcnt({pending+3-i})")
            if i == 0:
                a(f"v_max3_u32 v{vT0}, v{b}, v{b+1}, v{b+2}\nv_max_u32 v{vT0}, v{vT0}, v{b+3}")
            else:
                a(f"v_max3_u32 v{vT0}, v{vT0}, v{b}, v{b+1}\nv_max3_u32 v{vT0}, v{vT0}, v{b+2}, v{b+3}")
        a(f"v_cmp_eq_u32 vcc, -1, v{vT0}")
    def h2_write(G):
        for i in range(4):
            a(f"ds_write_b128 v{hA+3}, {vr(G+4*i,4)} offset:{1024*i}")
    if h2mode == 0:
        a("L_h2:")
        h2_issue(G2)
        a(f"s_add_u32 s{sCnt}, s{sCnt}, 1")
        for i in range(4):
            b = G2 + 4*i
            a(f"s_waitcnt vmcnt({3-i})")
            a(f"ds_write_b128 v{hA+3}, {vr(b,4)} offset:{1024*i}")
            if i == 0:
                a(f"v_max3_u32 v{vT0}, v{b}, v{b+1}, v{b+2}\nv_max_u32 v{vT0}, v{vT0}, v{b+3}")
            else:
                a(f"v_max3_u32 v{vT0}, v{vT0}, v{b}, v{b+1}\nv_max3_u32 v{vT0}, v{vT0}, v{b+2}, v{b+3}")
        a(f"""v_cmp_eq_u32 vcc, -1, v{vT0}
s_bitcmp1_b32 s{sCnt}, 18
s_cbranch_scc1 L_h2_done
s_cbranch_vccz L_h2_done
s_waitcnt lgkmcnt(0)
s_branch L_h2
L_h2_done:""")
    elif h2mode == 1:
        a("L_h2:")
        h2_issue(G2)
        a(f"s_add_u32 s{sCnt}, s{sCnt}, 1")
        h2_check(G2, 0)
        a(f"""s_bitcmp1_b32 s{sCnt}, 18
s_cbranch_scc1 L_h2_done
s_cbranch_vccnz L_h2
L_h2_done:""")
        h2_write(G2)
    elif h2mode == 2:
        G3 = G2 + 16
        h2_issue(G2)
        a("L_h2:")
        h2_issue(G3)
        a(f"s_add_u32 s{sCnt}, s{sCnt}, 1")
        h2_check(G2, 4)
        a(f"s_cbranch_vccz L_h2_a")
        h2_issue(G2)
        h2_check(G3, 4)
        a(f"""s_bitcmp1_b32 s{sCnt}, 18
s_cbranch_scc1 L_h2_b
s_cbranch_vccnz L_h2
L_h2_b:""")
        h2_write(G3)
        a("s_branch L_h2_done\nL_h2_a:")
        h2_write(G2)
        a("L_h2_done:")
    set_flag(F_STAGE, vT1)
    stamp(8)
    stamp_val(12, sCnt)
    a(f"""s_cmp_lg_u32 s{sJ}, 0
s_cbranch_scc1 L_fin
v_mov_b32 v{vT0}, 0
s_mov_b32 s{sT}, {W_E}
s_mov_b64 exec, 1
buffer_store_dwordx2 {vr(hX+4,2)}, v{vT0}, {sr(SWS,4)}, s{sT} offen
s_mov_b64 exec, -1
L_fin:""")
    if stamps:
        a(f"""
s_load_dwordx2 s[16:17], s[0:1], 48
s_waitcnt lgkmcnt(0)
s_add_u32 s{SST}, s16, {STAMP_OFF}
s_addc_u32 s{SST+1}, s17, 0
s_mov_b32 s{SST+2}, {256*16*64}
s_mov_b32 s{SST+3}, 0x20000
s_lshl_b32 s{sT}, s2, 4
s_add_u32 s{sT}, s{sT}, s{sW}
s_lshl_b32 s{sT}, s{sT}, 6
v_lshlrev_b32 v{vT1}, 2, v{vL}
s_mov_b64 exec, 0xffff
buffer_store_dword v{vS}, v{vT1}, {sr(SST,4)}, s{sT} offen
""")
    a("L_end:\ns_endpgm")
    return a, k

def build(**kw):
    a, k = gen(**kw)
    txt = '.amdgcn_target "amdgcn-amd-amdhsa--gfx950"\n.text\n' + a.text()
    hdr = HEADER + f"; @launch grid=(256,1,1) block=(640,1,1) lds={LDS_BYTES}\n"
    return hdr + txt + descriptor(k, NVGPR, sgpr=80)

if __name__ == '__main__':
    V = eval(open(sys.argv[1]).read())
    for n, kw in V.items():
        open(n + '.s', 'w').write(build(**kw))
    print(' '.join(n + '.s' for n in V))
```

```python
import gen6
from asmlib import *
from gen2 import HEADER
def make(order):
    a, k = gen6.gen(name='main_kernel', prefetch='pre', pfmask=7, onex8=True, h2mode=1, bar_at=3)
    a(""".globl nop_kernel
.p2align 8
.type nop_kernel,@function
nop_kernel:
s_endpgm""")
    lines = {'m': f"; @launch kernel={k} grid=(256,1,1) block=(640,1,1) lds={gen6.LDS_BYTES}\n", 'n': "; @launch kernel=nop_kernel grid=(1,1,1) block=(64,1,1) lds=0\n"}
    hdr = HEADER + ''.join(lines[c] for c in order)
    return hdr + '.amdgcn_target "amdgcn-amd-amdhsa--gfx950"\n.text\n' + a.text() + descriptor(k, gen6.NVGPR, sgpr=80) + descriptor('nop_kernel', 8, sgpr=16)
for o in ('m', 'nm', 'mn', 'nnm'):
    open(f'list_{o}.s', 'w').write(make(o))
    open(f'list_{o}_b.s', 'w').write(make(o))
```

```python
import sys
from asmlib import *
from gen2 import NAME, HEADER, LOG2E, CMUL, EPS, STAMP_OFF

sW, sH, sJ = 3, 18, 19
SK, SOUT, SOH, SWS, SOM = 20, 32, 36, 40, 44
sBase, sT, sU, sOff, sCnt, sMode, sXcc = 48, 49, 50, 52, 53, 54, 55
sTag = 56
sTmp64 = 58
sStamp = 60
sStamp0 = 62
SST = 64
sProg, sNeed, sPo = 68, 69, 70
sEv = 72
WS_HEAD = 8192
W_KV, W_R, W_R2, W_E = 0, 4096, 4096 + 256, 4096 + 512
L_FL = 0
L_Z = 384
L_KQ = 512
L_V, L_OM, L_PHI, L_KVB = L_KQ + 65536, L_KQ + 131072, L_KQ + 135168, L_KQ + 139264
F_CNT, F_MODE, F_STAGE, F_PROG = 0, 1, 2, 3
LDS_BYTES = L_KVB + 4096
vL, vN, vG, vT0, vT1, vT2, vS = 1, 2, 3, 4, 5, 6, 7
vFA = 8
vFL = 10
vF = 16
vPub, vM0, vM1, vTR0, vTR1, vPA = 20, 21, 22, 23, 24, 25
vPhi, vZ = 26, 28
vB = 30
TA, TB = 34, 38
vP, vGm, vD2, vRcp = 42, 46, 50, 54
vOA, vZA = 58, 59
OM, FR, KVB, PK = 64, 96, 128, 160
NVGPR = 168
SPIN = 1 << 16
LSPIN = 1 << 20

def gen(N=20, stamps=False, lf='nt', sf='nt', gf='sc1', force_slow=False, name=None, fill='nt', fillwide=True,
        spread=7, rdyat=12, zat=32, h1at=None, prefetch='helper', pfmask=15, vsplit=28, h2wait=True, bar_at=None, touch=True, NQ=None, fillmode='start', zat2=None, dual=False, h2mode=1, lateload=False, stag=None, gateA=None, gateB=None, gbit=3, onex8=False, st_first=False, compact=False, tlb=None, h1b=None, lfill=False, earlybar=False, wb=None):
    a = Asm()
    k = name or NAME + '_kernel'
    uid = [0]
    def stamp(i):
        if stamps:
            a(f"s_memrealtime s[{sStamp}:{sStamp+1}]\ns_waitcnt lgkmcnt(0)\nv_writelane_b32 v{vS}, s{sStamp}, {i}")
    def stamp_val(i, s):
        if stamps:
            a(f"v_writelane_b32 v{vS}, s{s}, {i}")
    def wait_flags(conds):
        uid[0] += 1
        lab = f"L_wf{uid[0]}"
        a(f"s_mov_b32 s{sCnt}, 0\n{lab}:")
        if len(conds) == 1:
            w = conds[0][0]
            a(f"ds_read_b32 v{vFL+w}, v{vFA} offset:{4*w}")
        else:
            a(f"ds_read_b128 {vr(vFL,4)}, v{vFA}")
        a(f"s_add_u32 s{sCnt}, s{sCnt}, 1\ns_bitcmp1_b32 s{sCnt}, 23\ns_cbranch_scc1 {lab}_x\ns_waitcnt lgkmcnt(0)")
        for w, m in conds:
            a(f"v_cmp_gt_i32 vcc, {m}, v{vFL+w}\ns_cbranch_vccnz {lab}")
        a(f"{lab}_x:")
    def set_flag(word, vreg, op='ds_write_b32'):
        a(f"s_mov_b64 exec, 1\n{op} v{vFA}, v{vreg} offset:{4*word}\ns_mov_b64 exec, -1")
    def store2(text):
        uid[0] += 1
        lab = f"L_st{uid[0]}"
        lines = text.strip().split('\n')
        a(f"s_cmp_eq_u32 s{sMode}, 1\ns_cbranch_scc0 {lab}_s")
        for ln in lines: a(ln)
        a(f"s_branch {lab}_d\n{lab}_s:")
        for ln in lines: a(ln + ' sc1')
        a(f"{lab}_d:")
    a(f""".globl {k}
.p2align 8
.type {k},@function
{k}:""")
    if stamps:
        a(f"s_memrealtime s[{sStamp0}:{sStamp0+1}]\nv_mov_b32 v{vS}, 0")
    lA, lP = 16, 20
    lag = (N - 1) // 4
    if bar_at is None:
        bar_at = lag + 1
    def code_prefetch(dst):
        a(f"""; pull this kernel's code into L2 (one lane per 128-byte line)
s_and_b32 s{sT}, s{sJ}, {pfmask}
s_cbranch_scc1 L_nopf
s_getpc_b64 s[{sTmp64}:{sTmp64+1}]
L_pc:
s_sub_u32 s{sTmp64}, s{sTmp64}, L_pc-{k}
s_subb_u32 s{sTmp64+1}, s{sTmp64+1}, 0
v_lshlrev_b32 v{vT2}, 7, v{vL}
v_min_u32 v{vT0}, L_end-{k}, v{vT2}
global_load_dword v{dst}, v{vT0}, s[{sTmp64}:{sTmp64+1}]
L_nopf:""")
    if onex8:
        a(f"s_load_dwordx8 s[4:11], s[0:1], 0")
    elif not lateload:
        a(f"s_load_dwordx2 s[{SK}:{SK+1}], s[0:1], 8")
    else:
        a(f"""v_cmp_gt_u32 vcc, 64, v0
s_cbranch_vccz L_nold
s_load_dwordx2 s[{SK}:{SK+1}], s[0:1], 8
s_load_dwordx8 s[4:11], s[0:1], 0
L_nold:""")
    a(f"""
v_readfirstlane_b32 s{sW}, v0
s_cmpk_ge_u32 s2, 256
s_cbranch_scc1 L_end
s_and_b32 s{sH}, s2, 15
s_lshr_b32 s{sJ}, s2, 4
s_lshl_b32 s{sT}, s{sH}, 20
s_lshl_b32 s{sU}, s{sJ}, 16
s_or_b32 s{sBase}, s{sT}, s{sU}
v_and_b32 v{vL}, 63, v0
v_mov_b32 v{vFA}, 0
v_lshlrev_b32 v{lP}, 2, v{vL}
s_cmp_eq_u32 s{sW}, 0
s_cbranch_scc1 L_loader
ds_write_b32 v{lP}, v{vFA}          ; flags start at zero""")
    if prefetch == 'pre':
        a(f"""s_and_b32 s{sT}, s{sJ}, {pfmask}
s_add_u32 s{sT}, s{sT}, s{sW}
s_cmpk_lg_u32 s{sT}, 128
s_cbranch_scc1 L_nopf
s_getpc_b64 s[{sTmp64}:{sTmp64+1}]
L_pc:
v_lshlrev_b32 v{vT2}, 7, v{vL}
v_min_u32 v{vT0}, L_end-L_pc, v{vT2}
global_load_dword v{PK}, v{vT0}, s[{sTmp64}:{sTmp64+1}]
L_nopf:""")
    a(f"""s_waitcnt lgkmcnt(0)
s_barrier                     ; B0
s_branch L_notloader
L_loader:
{'' if lateload or onex8 else 's_load_dwordx8 s[4:11], s[0:1], 0'}
{'s_load_dwordx2 s[12:13], s[0:1], 32' if lfill else ''}
v_lshrrev_b32 v{vT0}, 4, v0
v_and_b32 v{vT0}, 2, v{vT0}
v_xor_b32 v{vT0}, v{vT0}, v0
v_lshlrev_b32 v{lA}, 4, v{vT0}
s_mov_b32 s{SK+2}, 0x1000000
s_mov_b32 s{SK+3}, 0x20000
v_xor_b32 v{lA+1}, 64, v{lA}
v_xor_b32 v{lA+2}, 0x80, v{lA}
v_xor_b32 v{lA+3}, 0xc0, v{lA}
s_movk_i32 m0, {L_KQ}
s_mov_b32 s{sOff}, s{sBase}
s_movk_i32 s{sProg}, {-lag}
s_mov_b32 s{sEv}, {(1 << bar_at) | (1 << 16)}
s_mov_b32 s{sEv+1}, 0x10001
{'s_barrier                     ; B0: flags initialised' if earlybar else ''}
s_waitcnt lgkmcnt(0)""")
    if onex8:
        a(f"s_mov_b32 s{SK}, s6\ns_mov_b32 s{SK+1}, s7")
    if st_first:
        a(f"s_memrealtime s[{sTag}:{sTag+1}]")
    if stamps:
        a(f"v_writelane_b32 v{vS}, s{sStamp0}, 0")
    a("L_ld:")
    for t in range(4):
        if t == (N - 1) % 4:
            a(f"""v_mov_b32 v{vFL}, s{sProg}
s_cmp_lt_i32 s{sProg}, 1
s_waitcnt vmcnt({N-1})
s_cbranch_scc1 L_ld_noprog
ds_write_b32 v{lP}, v{vFL} offset:{4*F_PROG}
L_ld_noprog:""")
        else:
            a(f"s_waitcnt vmcnt({N-1})")
        a(f"buffer_load_dwordx4 v{lA+t}, {sr(SK,4)}, s{sOff} offen offset:{t*1024} {lf} lds")
    a(f"""s_add_u32 s{sT}, s{sProg}, {lag + 1}
s_add_u32 s{sOff}, s{sOff}, 4096
s_add_u32 m0, m0, 4096
s_add_u32 s{sProg}, s{sProg}, 1
s_bitcmp1_b64 s[{sEv}:{sEv+1}], s{sT}
s_cbranch_scc0 L_ld
s_cmp_eq_u32 s{sT}, 16
s_cbranch_scc1 L_ld_toV
s_cmp_eq_u32 s{sT}, 32
s_cbranch_scc1 L_ld_toQ
s_cmp_eq_u32 s{sT}, 48
s_cbranch_scc1 L_ld_drain
s_setprio 2
s_mov_b32 s{SOM}, s10
s_mov_b32 s{SOM+1}, s11
s_mov_b32 s{SOM+2}, 4096
s_mov_b32 s{SOM+3}, 0x20000
s_mov_b32 s{sU}, m0
s_mov_b32 m0, {L_OM}
s_nop 0""")
    for t in range(4):
        a(f"buffer_load_dwordx4 v{lA+t}, {sr(SOM,4)}, 0 offen offset:{t*1024} lds")
    if lfill:
        a(f"""; line fill of this workgroup's partial-sum slot (one lane per 128-byte line)
s_and_b32 s{sT}, s{sJ}, {spread}
s_lshl_b32 s{sT}, s{sT}, 13
s_add_u32 s{sT}, s{sT}, s{sBase}
v_lshl_add_u32 v{vT1}, v0, 7, s{sT}
global_load_dword v{vT2}, v{vT1}, s[12:13] {fill}""")
    if tlb == 'vec':
        a(f"""; touch this workgroup's V and Q pages so that their translations are ready when the streams get there
v_mov_b32 v{vT1}, s{sBase}
s_mov_b64 exec, 1
global_load_dword v{vT2}, v{vT1}, s[8:9]
global_load_dword v{vT0}, v{vT1}, s[4:5]
s_mov_b64 exec, -1""")
    elif tlb == 'sca':
        a(f"""s_load_dword s{sTag}, s[8:9], s{sBase}
s_load_dword s{sTag+1}, s[4:5], s{sBase}""")
    a(f"""s_mov_b32 m0, s{sU}
{'' if earlybar else 's_barrier                     ; B0: flags initialised'}""")
    stamp(1)
    if st_first:
        a(f"v_writelane_b32 v{vS}, s{sTag}, 1")
    a(f"""s_branch L_ld
L_ld_toV:""")
    stamp(2)
    a(f"""s_mov_b32 s{SK}, s8
s_mov_b32 s{SK+1}, s9
s_mov_b32 s{sOff}, s{sBase}
s_branch L_ld
L_ld_toQ:""")
    stamp(3)
    a(f"""s_mov_b32 s{SK}, s4
s_mov_b32 s{SK+1}, s5
s_mov_b32 s{sOff}, s{sBase}
s_movk_i32 m0, {L_KQ}""")
    wait_flags([(F_CNT, 8)])
    lagq = lag
    def qloop(tag, NQ, first=32, last=48):
        lagq = (NQ - 1) // 4
        a(f"""s_movk_i32 s{sProg}, {first - lagq}
L_ldq{tag}:
s_waitcnt vmcnt({NQ-1})
buffer_load_dwordx4 v{lA}, {sr(SK,4)}, s{sOff} offen {lf} lds
s_waitcnt vmcnt({NQ-1})
buffer_load_dwordx4 v{lA+1}, {sr(SK,4)}, s{sOff} offen offset:1024 {lf} lds
s_waitcnt vmcnt({NQ-1})
buffer_load_dwordx4 v{lA+2}, {sr(SK,4)}, s{sOff} offen offset:2048 {lf} lds
v_mov_b32 v{vFL}, s{sProg}
s_waitcnt vmcnt({NQ-1})
ds_max_i32 v{lP}, v{vFL} offset:{4*F_PROG}
buffer_load_dwordx4 v{lA+3}, {sr(SK,4)}, s{sOff} offen offset:3072 {lf} lds
s_add_u32 s{sOff}, s{sOff}, 4096
s_add_u32 m0, m0, 4096
s_add_u32 s{sProg}, s{sProg}, 1
s_cmp_lt_i32 s{sProg}, {last - lagq}
s_cbranch_scc1 L_ldq{tag}""")
        return lagq
    def drain_to(upto, lg):
        for done in range(upto - lg, upto + 1):
            a(f"v_mov_b32 v{vFL}, {done}\ns_waitcnt vmcnt({(upto-done)*4})\nds_max_i32 v{lP}, v{vFL} offset:{4*F_PROG}")
    if stag:
        NA, NB, pre, rel, preB = stag
        a(f"s_bitcmp1_b32 s2, {gbit}\ns_cbranch_scc1 L_qB")
        if pre:
            qloop('A0', N, 32, 32 + pre)
        drain_to(32 + pre, lag)
        wait_flags([(F_STAGE, rel)])
        qloop('A', NA, 32 + pre)
        a("s_branch L_ld_drain\nL_qB:")
        if preB:
            qloop('B0', N, 32, 32 + preB)
        qloop('B', NB, 32 + preB)
        lagq = (max(NA, NB) - 1) // 4
    elif NQ is None or NQ == N:
        a("s_branch L_ld")
    else:
        lagq = qloop('', NQ)
    a("L_ld_drain:")
    stamp(4)
    for done in range(48 - lagq + ((48 - lagq) & 1), 49, 2):
        a(f"v_mov_b32 v{vFL}, {done}\ns_waitcnt vmcnt({(48-done)*4})\nds_max_i32 v{lP}, v{vFL} offset:{4*F_PROG}")
    stamp(5)
    a("s_branch L_fin" if stamps else "s_endpgm")
    a(f"""L_notloader:
s_load_dwordx2 s[12:13], s[0:1], 32
s_load_dwordx2 s[16:17], s[0:1], 48
s_lshr_b32 s{sW}, s{sW}, 6
s_cmp_eq_u32 s{sW}, 1
s_cbranch_scc1 L_helper""")
    if prefetch == 'first':
        a(f"s_cmp_lg_u32 s{sW}, 2\ns_cbranch_scc1 L_nopf")
        code_prefetch(PK)
    a(f"""
v_and_b32 v{vN}, 15, v0
v_bfe_u32 v{vG}, v0, 4, 2
s_mov_b32 s{SOUT+2}, 65536
s_mov_b32 s{SOUT+3}, 0x20000
s_sub_u32 s{sW}, s{sW}, 2
s_lshl_b32 s{sNeed}, s{sW}, 1
s_add_u32 s{sNeed}, s{sNeed}, 2
v_and_b32 v{vT1}, 7, v{vN}
v_lshlrev_b32 v{vT0}, 1, v{vT1}
v_xor_b32 v{vT0}, v{vG}, v{vT0}
v_lshlrev_b32 v{vT0}, 4, v{vT0}
v_lshl_add_u32 v{vT2}, v{vN}, 9, v{vT0}
s_lshl_b32 s{sT}, s{sW}, 13
v_add_u32 v{vT2}, {L_KQ}, v{vT2}
v_add_u32 v{vF}, s{sT}, v{vT2}
v_xor_b32 v{vF+1}, 64, v{vF}
v_xor_b32 v{vF+2}, 0x80, v{vF}
v_xor_b32 v{vF+3}, 0xc0, v{vF}
v_lshl_add_u32 v{vT0}, v{vT1}, 9, v{vT0}
v_add_u32 v{vB}, {L_OM}, v{vT0}
v_xor_b32 v{vB+1}, 64, v{vB}
v_xor_b32 v{vB+2}, 0x80, v{vB}
v_xor_b32 v{vB+3}, 0xc0, v{vB}
v_lshlrev_b32 v{vT0}, 11, v{vG}
v_lshl_add_u32 v{vT0}, v{vN}, 4, v{vT0}
v_add_u32 v{vOA}, s{sT}, v{vT0}
v_lshlrev_b32 v{vT0}, 2, v{vG}
v_sub_u32 v{vT0}, v{vN}, v{vT0}
v_mov_b32 v{vT1}, 0xffff
v_mov_b32 v{vT2}, 0xffff0000
v_cmp_eq_u32 vcc, 0, v{vT0}
v_cmp_eq_u32 s[{sTmp64}:{sTmp64+1}], 1, v{vT0}
v_cndmask_b32 v{vM0}, 0, v{vT1}, vcc
v_cmp_eq_u32 vcc, 2, v{vT0}
v_cndmask_b32 v{vM0}, v{vM0}, v{vT2}, s[{sTmp64}:{sTmp64+1}]
v_cmp_eq_u32 s[{sTmp64}:{sTmp64+1}], 3, v{vT0}
v_cndmask_b32 v{vM1}, 0, v{vT1}, vcc
v_and_b32 v{TA}, 0x3e803e80, v{vM0}
v_cndmask_b32 v{vM1}, v{vM1}, v{vT2}, s[{sTmp64}:{sTmp64+1}]
v_and_b32 v{TA+1}, 0x3e803e80, v{vM1}
v_lshrrev_b32 v{vT0}, 2, v{vL}
v_and_b32 v{vT1}, 7, v{vT0}
s_lshl_b32 s{sT}, s{sW}, 1
v_xor_b32 v{vT1}, s{sT}, v{vT1}
v_lshlrev_b32 v{vT1}, 5, v{vT1}
v_lshl_add_u32 v{vTR0}, v{vT0}, 9, v{vT1}
v_and_b32 v{vT1}, 3, v{vL}
v_lshl_add_u32 v{vTR0}, v{vT1}, 3, v{vTR0}
v_add_u32 v{vTR0}, {L_V}, v{vTR0}
v_xor_b32 v{vTR1}, 32, v{vTR0}
v_lshlrev_b32 v{vT0}, 4, v{vL}
v_add_u32 v{vPA}, {L_PHI}, v{vT0}
s_and_b32 s{sU}, s{sJ}, {spread}
s_lshl_b32 s{sU}, s{sU}, 3
s_add_u32 s{sU}, s{sU}, s{sW}
s_lshl_b32 s{sU}, s{sU}, 10
v_add_u32 v{vPub}, s{sU}, v{vT0}
v_and_b32 v{vZA}, 1, v{vG}
v_lshlrev_b32 v{vZA}, 3, v{vZA}
v_add_u32 v{vZA}, {L_Z}, v{vZA}
v_cmp_gt_u32 s[{sTmp64}:{sTmp64+1}], 32, v{vL}
s_lshr_b32 s{sT}, s{sW}, 1
s_lshl_b32 s{sT}, s{sT}, 10
s_and_b32 s{sU}, s{sW}, 1
s_lshl_b32 s{sU}, s{sU}, 3
s_add_u32 s{sT}, s{sT}, s{sU}
v_add_u32 v{vT2}, s{sT}, v{vPA}
s_waitcnt lgkmcnt(0)
s_add_u32 s{SOUT}, s12, s{sBase}
s_addc_u32 s{SOUT+1}, s13, 0""")
    if stamps:
        a(f"v_writelane_b32 v{vS}, s{sStamp0}, 0")
    stamp(1)
    wait_flags([(F_PROG, bar_at + 1)])
    for u in range(8):
        a(f"ds_read_b128 {vr(OM+4*u,4)}, v{vB+(u&3)} offset:{256*(u>>2)}")
    a(f"""; B-fragment read addresses for the output phase
v_and_b32 v{vT0}, 1, v{vG}
v_lshlrev_b32 v{vT0}, 11, v{vT0}
v_lshl_add_u32 v{vT0}, v{vN}, 6, v{vT0}
v_lshrrev_b32 v{vT1}, 2, v{vN}
v_lshl_add_u32 v{vT0}, v{vT1}, 4, v{vT0}
v_add_u32 v{vB}, {L_KVB}, v{vT0}
v_xor_b32 v{vB+1}, 16, v{vB}
v_xor_b32 v{vB+2}, 32, v{vB}
v_xor_b32 v{vB+3}, 48, v{vB}
v_mov_b32 v{vT1}, 1""")
    wait_flags([(F_PROG, f"s{sNeed}")])
    stamp(2)
    def phi(isq):
        for u in range(8):
            a(f"ds_read_b128 {vr(FR+4*u,4)}, v{vF+(u&3)} offset:{256*(u>>2)}")
        gd, cc = (TB+2, TA+2) if isq else (TA+2, TB+2)
        a(f"v_mov_b32 v{cc}, 0xbd00bd00\nv_mov_b32 v{cc+1}, 0xbd00bd00")
        for u in range(8):
            a(f"s_waitcnt lgkmcnt({7-u})")
            c1 = '0' if u == 0 else vr(vP, 4)
            c2 = '0' if u == 0 else vr(vGm, 4)
            a(f"v_mfma_f32_16x16x32_bf16 {vr(vGm,4)}, {vr(FR+4*u,4)}, {vr(FR+4*u,4)}, {c2}")
            if isq:
                a(f"v_mfma_f32_16x16x32_bf16 {vr(vP,4)}, {vr(OM+4*u,4)}, {vr(FR+4*u,4)}, {c1}")
            else:
                a(f"v_mfma_f32_16x16x32_bf16 {vr(vP,4)}, {vr(FR+4*u,4)}, {vr(OM+4*u,4)}, {c1}")
        a(f"""
v_cvt_pk_bf16_f32 v{gd}, v{vGm}, v{vGm+1}
v_cvt_pk_bf16_f32 v{gd+1}, v{vGm+2}, v{vGm+3}
v_and_b32 v{gd}, v{gd}, v{vM0}
v_and_b32 v{gd+1}, v{gd+1}, v{vM1}
v_cvt_pk_bf16_f32 v{TB}, v{vP}, v{vP+1}
v_cvt_pk_bf16_f32 v{TB+1}, v{vP+2}, v{vP+3}
v_mfma_f32_16x16x32_bf16 {vr(vD2,4)}, {vr(TA,4)}, {vr(TB,4)}, 0
""")
        for op in (lambda r: f"v_cvt_pk_bf16_f32 v{r}, 0, v{r}",
                   lambda r: f"v_mul_f32 v{r}, {LOG2E}, v{r}",
                   lambda r: f"v_exp_f32 v{r}, v{r}",
                   lambda r: f"v_cvt_pk_bf16_f32 v{r}, 0, v{r}",
                   lambda r: f"v_mul_f32 v{r}, {CMUL}, v{r}",
                   lambda r: f"v_cvt_pk_bf16_f32 v{r}, 0, v{r}",
                   lambda r: f"v_add_f32 v{r}, {EPS}, v{r}"):
            for r in range(4):
                a(op(vD2 + r))
        a(f"""
v_cvt_pk_bf16_f32 v{vPhi}, v{vD2}, v{vD2+1}
v_cvt_pk_bf16_f32 v{vPhi+1}, v{vD2+2}, v{vD2+3}
""")
    phi(False)
    a(f"ds_write_b64 v{vT2}, {vr(vPhi,2)}")
    set_flag(F_CNT, vT1, 'ds_add_u32')
    a(f"s_add_u32 s{sNeed}, s{sNeed}, 32")
    stamp(3)
    AF, BF, D0, D1 = KVB, FR, vP, vGm
    def v_reads(s):
        for u in range(2):
            for hh in range(2):
                a(f"ds_read_b64_tr_b16 {vr(BF+8*s+4*u+2*hh,2)}, v{vTR0+u} offset:{(32*s+16*hh)*512}")
    def v_mf(s):
        c = lambda D: '0' if s == 0 else vr(D, 4)
        a(f"""v_mfma_f32_16x16x32_bf16 {vr(D0,4)}, {vr(AF+4*s,4)}, {vr(BF+8*s,4)}, {c(D0)}
v_mfma_f32_16x16x32_bf16 {vr(D1,4)}, {vr(AF+4*s,4)}, {vr(BF+8*s+4,4)}, {c(D1)}""")
    wait_flags([(F_PROG, vsplit), (F_CNT, 8), (F_MODE, 1)])
    stamp(4)
    a(f"v_readfirstlane_b32 s{sMode}, v{vFL+F_MODE}\ns_waitcnt vmcnt(0)                  ; code prefetch (wave 2) has long landed")
    for s in range(4):
        a(f"ds_read_b128 {vr(AF+4*s,4)}, v{vPA} offset:{1024*s}")
    v_reads(0); v_reads(1)
    a("s_waitcnt lgkmcnt(4)"); v_mf(0)
    v_reads(2)
    a("s_waitcnt lgkmcnt(4)"); v_mf(1)
    a("s_waitcnt lgkmcnt(0)"); v_mf(2)
    wait_flags([(F_PROG, 32)])
    stamp(5)
    v_reads(3)
    a(f"s_waitcnt lgkmcnt(2)\nv_mfma_f32_16x16x32_bf16 {vr(D0,4)}, {vr(AF+12,4)}, {vr(BF+24,4)}, {vr(D0,4)}")
    a(f"s_waitcnt lgkmcnt(0)\nv_mfma_f32_16x16x32_bf16 {vr(D1,4)}, {vr(AF+12,4)}, {vr(BF+28,4)}, {vr(D1,4)}")
    for r in range(4):
        a(f"v_cndmask_b32 v{vD2+r}, v{D1+r}, v{D0+r}, s[{sTmp64}:{sTmp64+1}]")
    for r in range(4):
        a(f"v_min_u32 v{vD2+r}, -2, v{vD2+r}")
    store2(f"buffer_store_dwordx4 {vr(vD2,4)}, v{vPub}, {sr(SOUT,4)}, 0 offen")
    if h1at is not None:
        set_flag(F_CNT, vT1, 'ds_add_u32')
    stamp(6)
    wait_flags([(F_PROG, f"s{sNeed}")])
    stamp(7)
    phi(True)
    a(f"""v_cndmask_b32 v{vPhi}, 0, v{vPhi}, s[{sTmp64}:{sTmp64+1}]
v_cndmask_b32 v{vPhi+1}, 0, v{vPhi+1}, s[{sTmp64}:{sTmp64+1}]""")
    stamp(8)
    wait_flags([(F_STAGE, 1)])
    a(f"""ds_read_b64 {vr(vZ,2)}, v{vZA}
s_waitcnt lgkmcnt(0)
v_mfma_f32_16x16x16_bf16 {vr(vD2,4)}, {vr(vPhi,2)}, {vr(vZ,2)}, 0""")
    for op in (lambda r: f"v_cvt_pk_bf16_f32 v{vRcp+r}, 0, v{vD2+r}",
               lambda r: f"v_add_f32 v{vRcp+r}, {EPS}, v{vRcp+r}",
               lambda r: f"v_cvt_pk_bf16_f32 v{vRcp+r}, 0, v{vRcp+r}",
               lambda r: f"v_rcp_f32 v{vRcp+r}, v{vRcp+r}"):
        for r in range(4):
            a(op(r))
    stamp(9)
    if gateA or gateB:
        a(f"s_bitcmp1_b32 s2, {gbit}\ns_cselect_b32 s{sNeed}, {gateB or 0}, {gateA or 0}")
        wait_flags([(F_STAGE, 3), (F_PROG, f"s{sNeed}")])
    else:
        wait_flags([(F_STAGE, 3)])
    stamp(10)
    for i in range(8):
        a(f"ds_read_b128 {vr(KVB+4*i,4)}, v{vB+(i&3)} offset:{1024*(i>>2)}")
    ACC = OM
    def out_mf(hf, c):
        i = hf*4 + (c >> 1)
        if c % 2 == 0:
            a(f"s_waitcnt lgkmcnt({7-i})")
        a(f"v_mfma_f32_16x16x16_bf16 {vr(ACC+32*hf+4*c,4)}, {vr(vPhi,2)}, {vr(KVB+4*i+2*(c&1),2)}, 0")
    def scale(x, r):
        a(f"v_cvt_pk_bf16_f32 v{x}, 0, v{x}")
        a(f"v_cvt_pk_bf16_f32 v{x+1}, 0, v{x+1}")
        a(f"v_pk_mul_f32 {vr(x,2)}, {vr(x,2)}, {vr(vRcp+r,2)}")
    for c in range(8):
        out_mf(0, c)
        if c >= 3:
            scale(ACC + 4*(c-3), 0)
    for c in range(5, 8):
        out_mf(1, c - 5)
        scale(ACC + 4*c, 0)
    cnt = 0
    for hf in range(2):
        for r in range(4):
            regs = [ACC+32*hf+4*c+r for c in range(8)]
            if r % 2 == 0 and (hf, r) != (0, 0):
                for ci, x in enumerate(regs):
                    scale(x, r)
                    if (hf, r) == (0, 2) and ci < 5:
                        out_mf(1, 3 + ci)
            pkr = PK + 4*(cnt % 2); cnt += 1
            for c2 in range(4):
                a(f"v_cvt_pk_bf16_f32 v{pkr+c2}, v{regs[2*c2]}, v{regs[2*c2+1]}")
            a(f"buffer_store_dwordx4 {vr(pkr,4)}, v{vOA}, {sr(SOUT,4)}, 0 offen offset:{r*512+hf*256} {sf}")
            if cnt == 1:
                stamp(11)
    if wb:
        jm, wv, wait = wb
        a(f"""s_and_b32 s{sT}, s{sJ}, {jm}
s_lshl_b32 s{sT}, s{sT}, 3
s_add_u32 s{sT}, s{sT}, s{sW}
s_cmp_lg_u32 s{sT}, {wv}
s_cbranch_scc1 L_nowb
{'s_waitcnt vmcnt(0)' if wait else ''}
buffer_wbl2 sc1
L_nowb:""")
    stamp(12)
    if stamps:
        a("s_waitcnt vmcnt(0)")
        stamp(13)
        a(f"s_add_u32 s{sW}, s{sW}, 2\ns_branch L_fin")
    else:
        a("s_endpgm")
    hA, hC, hZ, hR, hK = 16, 20, 21, 22, 23
    hONE, hAF, hD, hG = 24, 28, 44, 64
    hX = 48
    a(f"""L_helper:
s_setprio 3""")
    if prefetch == 'helper':
        code_prefetch(hG + 31)
    a(f"""s_mul_i32 s{sT}, s{sH}, {WS_HEAD}
s_waitcnt lgkmcnt(0)
s_add_u32 s{SWS}, s16, s{sT}
s_addc_u32 s{SWS+1}, s17, 0
s_load_dwordx2 s[{sTag}:{sTag+1}], s[{SWS}:{SWS+1}], {W_E}""")
    if stamps:
        a(f"v_writelane_b32 v{vS}, s{sStamp0}, 0")
    a(f"""s_mov_b32 s{SWS+2}, {WS_HEAD}
s_mov_b32 s{SWS+3}, 0x20000
s_add_u32 s{SOUT}, s12, s{sBase}
s_addc_u32 s{SOUT+1}, s13, 0
s_mov_b32 s{SOUT+2}, 65536
s_mov_b32 s{SOUT+3}, 0x20000
s_lshl_b32 s{sT}, s{sH}, 20
s_add_u32 s{SOH}, s12, s{sT}
s_addc_u32 s{SOH+1}, s13, 0
s_mov_b32 s{SOH+2}, 0x100000
s_mov_b32 s{SOH+3}, 0x20000
s_getreg_b32 s{sXcc}, hwreg(HW_REG_XCC_ID, 0, 4)
v_and_b32 v{vN}, 15, v0
v_bfe_u32 v{vG}, v0, 4, 2
v_mov_b32 v{hONE}, -1
v_mov_b32 v{hONE+1}, -1
v_mov_b32 v{hONE+2}, -1
v_mov_b32 v{hONE+3}, -1
v_lshlrev_b32 v{hC}, 4, v{vL}
s_and_b32 s{sPo}, s{sJ}, {spread}
s_add_u32 s{sU}, s{sPo}, 1
s_and_b32 s{sU}, s{sU}, 7
s_lshl_b32 s{sU}, s{sU}, 13
s_lshl_b32 s{sPo}, s{sPo}, 13
v_add_u32 v{hX}, 4096, v{hC}
v_and_b32 v{vT0}, 0x2f, v{vL}
v_cmp_eq_u32 vcc, 0, v{vT0}
v_lshlrev_b32 v{vT0}, 4, v{vG}
v_add_u32 v{vT0}, s{sU}, v{vT0}
v_mov_b32 v{vT1}, 0x7fffff00
v_cndmask_b32 v{hZ}, v{vT1}, v{vT0}, vcc
v_lshrrev_b32 v{vT0}, 3, v{vN}
s_lshl_b32 s{sT}, s{sJ}, 1
v_add_u32 v{vT0}, s{sT}, v{vT0}
v_bfe_u32 v{vT2}, v{vT0}, 2, 2
v_lshlrev_b32 v{hK}, 6, v{vT0}
v_bfe_u32 v{vT0}, v{vN}, 1, 2
v_xor_b32 v{vT0}, v{vT0}, v{vT2}
v_lshl_add_u32 v{hK}, v{vT0}, 4, v{hK}
v_and_b32 v{vT0}, 1, v{vN}
v_lshl_add_u32 v{hK}, v{vT0}, 3, v{hK}
v_lshl_add_u32 v{hK}, v{vG}, 11, v{hK}
v_cmp_gt_u32 vcc, 32, v{vL}
v_lshlrev_b32 v{hR}, 3, v{vN}
v_lshlrev_b32 v{vT2}, 7, v{vL}
v_cndmask_b32 v{hK}, v{vT1}, v{hK}, vcc
""")
    def big_fill():
        if fillwide:
            for t in range(8):
                a(f"buffer_load_dwordx4 {vr(hG+4*(t&3),4)}, v{hC if t < 4 else hF}, {sr(SOUT,4)}, s{sPo} offen offset:{(t&3)*1024} {fill}")
        else:
            a(f"buffer_load_dword v{hG}, v{hF}, {sr(SOUT,4)}, s{sPo} offen {fill}")
    hF = 56
    a(f"v_mov_b32 v{hF}, v{hX if fillwide else vT2}")
    if fillmode == 'start' and not lfill:
        big_fill()
    a(f"buffer_load_dword v{hAF}, v{hZ}, {sr(SOUT,4)}, 0 offen {fill}")
    a(f"buffer_load_dword v{hAF+1}, v{hK}, {sr(SWS,4)}, 0 offen offset:{W_KV} {fill}")
    def clear(fl):
        for t in range(8):
            a(f"buffer_store_dwordx4 {vr(hONE,4)}, v{hC if t < 4 else hX}, {sr(SOUT,4)}, s{sPo} offen offset:{(t&3)*1024} {fl}")
        a(f"buffer_store_dwordx4 {vr(hONE,4)}, v{hZ}, {sr(SOUT,4)}, 0 offen {fl}")
        a(f"buffer_store_dwordx2 {vr(hONE,2)}, v{hK}, {sr(SWS,4)}, 0 offen offset:{W_KV} {fl}")
    def ready(off):
        a(f"""s_lshl_b32 s{sT}, s{sJ}, 3
s_add_u32 s{sT}, s{sT}, {off}
v_mov_b32 v{vT0}, 0
s_waitcnt vmcnt(0)
s_mov_b64 exec, 1
buffer_store_dwordx2 {vr(hX+4,2)}, v{vT0}, {sr(SWS,4)}, s{sT} offen sc1
s_mov_b64 exec, -1""")
    def wait_ready(off, lab):
        a(f"""s_mov_b32 s{sCnt}, 0
s_mov_b32 s{sT}, {off}
{lab}:
buffer_load_dwordx2 {vr(hG,2)}, v{hR}, {sr(SWS,4)}, s{sT} offen sc1
s_add_u32 s{sCnt}, s{sCnt}, 1
s_waitcnt vmcnt(0)
v_and_b32 v{hG+2}, 15, v{hG}
v_and_b32 v{hG}, -16, v{hG}
v_cmp_ne_u64 vcc, s[{sTag}:{sTag+1}], {vr(hG,2)}
s_bitcmp1_b32 s{sCnt}, 18
s_cbranch_scc1 {lab}_done
s_cbranch_vccnz {lab}
{lab}_done:""")
    clear('')
    a(f"""s_waitcnt lgkmcnt(0)
s_and_b32 s{sTag}, s{sTag}, -16
s_mul_i32 s{sTag+1}, s{sTag+1}, 0x4c957f2d
s_mul_i32 s{sT}, s{sTag}, 0x5851f42d
s_add_u32 s{sTag+1}, s{sTag+1}, s{sT}
s_mul_hi_u32 s{sT}, s{sTag}, 0x4c957f2d
s_add_u32 s{sTag+1}, s{sTag+1}, s{sT}
s_mul_i32 s{sTag}, s{sTag}, 0x4c957f2d
s_add_u32 s{sTag}, s{sTag}, 0x767814f0
s_addc_u32 s{sTag+1}, s{sTag+1}, 0x4057b7ef
s_or_b32 s{sT}, s{sTag}, s{sXcc}
v_mov_b32 v{hX+4}, s{sT}
v_mov_b32 v{hX+5}, s{sTag+1}""")
    ready(W_R)
    stamp(1)
    a(f"""; hop-1 gather address: hi*(65536+slot) + j*512 + (l&31)*16 ; z gather: p*65536 + slot(p+1) + g2*16
v_lshrrev_b32 v{vT1}, 5, v{vL}
v_mul_u32_u24 v{hA}, {65536 + 8192*(spread & 1)}, v{vT1}
v_and_b32 v{vT1}, 31, v{vL}
v_lshl_add_u32 v{hA}, v{vT1}, 4, v{hA}
s_lshl_b32 s{sT}, s{sJ}, 9
v_add_u32 v{hA}, s{sT}, v{hA}
v_and_b32 v{vT1}, 1, v{vG}
v_lshlrev_b32 v{hA+2}, 3, v{vT1}
v_add_u32 v{hA+2}, {L_Z}, v{hA+2}
v_lshlrev_b32 v{vT1}, 4, v{vT1}
v_lshl_add_u32 v{hA+1}, v{vN}, 16, v{vT1}
v_and_b32 v{vT1}, {spread}, v{vN}
v_add_u32 v{vT1}, 1, v{vT1}
v_and_b32 v{vT1}, 7, v{vT1}
v_lshl_add_u32 v{hA+1}, v{vT1}, 13, v{hA+1}
v_add_u32 v{hA+3}, {L_KVB}, v{hC}""")
    hK2 = 57
    if dual:
        a(f"""; pair mode: gather 1 KiB (slices 2i, 2i+1) from every partial, publish both slices
s_lshr_b32 s{sT}, s{sJ}, 1
s_lshl_b32 s{sU}, s{sT}, 10
v_add_u32 v{hA}, s{sU}, v{hC}
v_lshrrev_b32 v{vT0}, 5, v{vL}
v_lshlrev_b32 v{vT0}, 1, v{vT0}
v_lshrrev_b32 v{vT1}, 3, v{vN}
v_add_u32 v{vT0}, v{vT0}, v{vT1}
s_lshl_b32 s{sU}, s{sT}, 2
v_add_u32 v{vT0}, s{sU}, v{vT0}
v_lshlrev_b32 v{hK2}, 6, v{vT0}
v_and_b32 v{vT1}, 7, v{vN}
v_lshlrev_b32 v{vT1}, 3, v{vT1}
s_and_b32 s{sT}, s{sT}, 3
s_lshl_b32 s{sT}, s{sT}, 4
v_xor_b32 v{vT1}, s{sT}, v{vT1}
v_add_u32 v{hK2}, v{hK2}, v{vT1}
v_and_b32 v{vT1}, 1, v{vG}
v_lshl_add_u32 v{hK2}, v{vT1}, 11, v{hK2}""")
    wait_flags([(F_PROG, rdyat)])
    stamp(2)
    wait_ready(W_R, 'L_rdy1')
    stamp(3)
    stamp_val(13, sCnt)
    a(f"""v_cmp_ne_u32 vcc, s{sXcc}, v{hG+2}
s_mov_b32 s{sMode}, 1""")
    if not force_slow:
        a("s_cbranch_vccz L_mode_done")
    a(f"s_mov_b32 s{sMode}, 2")
    clear('sc1')
    ready(W_R2)
    wait_ready(W_R2, 'L_rdy2')
    a(f"""L_mode_done:
v_mov_b32 v{vT1}, s{sMode}""")
    set_flag(F_MODE, vT1)
    a(f"""v_add_u32 v{vT0}, {L_PHI}, v{hC}
v_mov_b32 v{hONE}, 0x3f803f80
v_mov_b32 v{hONE+1}, 0x3f803f80
v_mov_b32 v{hONE+2}, 0x3f803f80
v_mov_b32 v{hONE+3}, 0x3f803f80""")
    wait_flags([(F_CNT, 8)])
    stamp(4)
    for s in range(4):
        a(f"ds_read_b128 {vr(hAF+4*s,4)}, v{vT0} offset:{1024*s}")
    for s in range(4):
        a(f"s_waitcnt lgkmcnt({3-s})\nv_mfma_f32_16x16x32_bf16 {vr(hD,4)}, {vr(hAF+4*s,4)}, {vr(hONE,4)}, {'0' if s == 0 else vr(hD,4)}")
    for r in range(4):
        a(f"v_min_u32 v{hD+r}, -2, v{hD+r}")
    store2(f"buffer_store_dwordx4 {vr(hD,4)}, v{hZ}, {sr(SOUT,4)}, 0 offen")
    wait_flags([(F_PROG, zat)])
    stamp(5)
    a(f"""s_mov_b32 s{sCnt}, 0
L_zg:
buffer_load_dwordx4 {vr(hX,4)}, v{hA+1}, {sr(SOH,4)}, 0 offen {gf}
s_add_u32 s{sCnt}, s{sCnt}, 1
s_waitcnt vmcnt(0)
v_max3_u32 v{vT0}, v{hX}, v{hX+1}, v{hX+2}
v_max_u32 v{vT0}, v{vT0}, v{hX+3}
v_cmp_eq_u32 vcc, -1, v{vT0}
s_bitcmp1_b32 s{sCnt}, 18
s_cbranch_scc1 L_zg_done
s_cbranch_vccnz L_zg
L_zg_done:""")
    stamp_val(14, sCnt)
    def h1_issue(G=None):
        G = hG if G is None else G
        for i in range(16 if dual else 8):
            a(f"s_mov_b32 s{sT}, {i*0x10000 + (i & spread)*8192 if dual else i*0x20000 + ((2*i) & spread)*8192}")
            a(f"buffer_load_dwordx4 {vr(G+4*i,4)}, v{hA}, {sr(SOH,4)}, s{sT} offen {gf}")
    def z_reduce():
        for sh in (8, 4, 2, 1):
            for r in range(4):
                a(f"v_add_f32_dpp v{hX+r}, v{hX+r}, v{hX+r} row_ror:{sh} row_mask:0xf bank_mask:0xf")
        a(f"""v_cvt_pk_bf16_f32 v{hX}, v{hX}, v{hX+1}
v_cvt_pk_bf16_f32 v{hX+1}, v{hX+2}, v{hX+3}
v_mov_b32 v{vT1}, 1
s_mov_b64 exec, 0x10001
ds_write_b64 v{hA+2}, {vr(hX,2)}
ds_write_b32 v{vFA}, v{vT1} offset:{4*F_STAGE}
s_mov_b64 exec, -1""")
    if h1at is None:
        stamp(6)
        h1_issue()
        z_reduce()
        if h1b:
            HB = hG + 32
            wait_flags([(F_PROG, h1b)])
            h1_issue(HB)
            a(f"s_mov_b32 s{sCnt}, 1")
            for i in range(8):
                a(f"s_waitcnt vmcnt({15-i})")
                b = hG + 4*i
                if i == 0:
                    a(f"v_max3_u32 v{vT0}, v{b}, v{b+1}, v{b+2}\nv_max_u32 v{vT0}, v{vT0}, v{b+3}")
                else:
                    a(f"v_max3_u32 v{vT0}, v{vT0}, v{b}, v{b+1}\nv_max3_u32 v{vT0}, v{vT0}, v{b+2}, v{b+3}")
                    a(f"v_pk_add_f32 {vr(hG,2)}, {vr(hG,2)}, {vr(b,2)}\nv_pk_add_f32 {vr(hG+2,2)}, {vr(hG+2,2)}, {vr(b+2,2)}")
            a(f"v_cmp_eq_u32 vcc, -1, v{vT0}")
            for r in range(4):
                a(f"v_mov_b32 v{hD+r}, v{hG+r}")
            a("s_cbranch_vccz L_h1_done\ns_waitcnt vmcnt(0)")
            for r in range(32):
                a(f"v_mov_b32 v{hG+r}, v{HB+r}")
            a("s_branch L_h1_check\nL_h1:")
        else:
            a(f"s_mov_b32 s{sCnt}, 0\ns_branch L_h1_check\nL_h1:")
    else:
        z_reduce()
        if fillmode == 'afterpub':
            wait_flags([(F_CNT, 16)])
            big_fill()
        if h1at == 0:
            a("s_waitcnt vmcnt(0)")
        else:
            wait_flags([(F_CNT, 16), (F_PROG, h1at)])
        stamp(6)
        a(f"s_mov_b32 s{sCnt}, 0\nL_h1:")
    h1_issue()
    a(f"L_h1_check:\ns_add_u32 s{sCnt}, s{sCnt}, 1")
    n1 = 16 if dual else 8
    for i in range(n1):
        a(f"s_waitcnt vmcnt({n1-1-i})")
        b = hG + 4*i
        if i == 0:
            a(f"v_max3_u32 v{vT0}, v{b}, v{b+1}, v{b+2}\nv_max_u32 v{vT0}, v{vT0}, v{b+3}")
        else:
            a(f"v_max3_u32 v{vT0}, v{vT0}, v{b}, v{b+1}\nv_max3_u32 v{vT0}, v{vT0}, v{b+2}, v{b+3}")
            a(f"v_pk_add_f32 {vr(hG,2)}, {vr(hG,2)}, {vr(b,2)}\nv_pk_add_f32 {vr(hG+2,2)}, {vr(hG+2,2)}, {vr(b+2,2)}")
    a(f"""v_cmp_eq_u32 vcc, -1, v{vT0}""")
    if dual:
        a(f"""v_cvt_pk_bf16_f32 v{hD}, v{hG}, v{hG+1}
v_cvt_pk_bf16_f32 v{hD+1}, v{hG+2}, v{hG+3}
v_min_u32 v{hD}, -2, v{hD}
v_min_u32 v{hD+1}, -2, v{hD+1}""")
    else:
        for r in range(4):
            a(f"v_mov_b32 v{hD+r}, v{hG+r}")
    a(f"""s_bitcmp1_b32 s{sCnt}, 18
s_cbranch_scc1 L_h1_done
s_cbranch_vccnz L_h1
L_h1_done:""")
    if dual:
        store2(f"buffer_store_dwordx2 {vr(hD,2)}, v{hK2}, {sr(SWS,4)}, 0 offen offset:{W_KV}")
    else:
        for r in range(4):
            a(f"v_permlane32_swap_b32 v{hG+r}, v{hD+r}")
        a(f"""v_pk_add_f32 {vr(hG,2)}, {vr(hG,2)}, {vr(hD,2)}
v_pk_add_f32 {vr(hG+2,2)}, {vr(hG+2,2)}, {vr(hD+2,2)}
v_cvt_pk_bf16_f32 v{hG+8}, v{hG}, v{hG+1}
v_cvt_pk_bf16_f32 v{hG+9}, v{hG+2}, v{hG+3}
v_min_u32 v{hG+8}, -2, v{hG+8}
v_min_u32 v{hG+9}, -2, v{hG+9}""")
        store2(f"buffer_store_dwordx2 {vr(hG+8,2)}, v{hK}, {sr(SWS,4)}, 0 offen offset:{W_KV}")
    if stag:
        a(f"v_mov_b32 v{vT1}, 2")
        set_flag(F_STAGE, vT1)
    stamp(7)
    stamp_val(15, sCnt)
    G2 = hG + 16
    a(f"s_mov_b32 s{sCnt}, 0\nv_mov_b32 v{vT1}, 3")
    if h2wait:
        a("s_waitcnt vmcnt(0)")
    def h2_issue(G):
        for i in range(4):
            a(f"buffer_load_dwordx4 {vr(G+4*i,4)}, v{hC}, {sr(SWS,4)}, 0 offen offset:{W_KV+1024*i} {gf}")
    def h2_check(G, pending):
        for i in range(4):
            b = G + 4*i
            a(f"s_waitcnt vmcnt({pending+3-i})")
            if i == 0:
                a(f"v_max3_u32 v{vT0}, v{b}, v{b+1}, v{b+2}\nv_max_u32 v{vT0}, v{vT0}, v{b+3}")
            else:
                a(f"v_max3_u32 v{vT0}, v{vT0}, v{b}, v{b+1}\nv_max3_u32 v{vT0}, v{vT0}, v{b+2}, v{b+3}")
        a(f"v_cmp_eq_u32 vcc, -1, v{vT0}")
    def h2_write(G):
        for i in range(4):
            a(f"ds_write_b128 v{hA+3}, {vr(G+4*i,4)} offset:{1024*i}")
    if h2mode == 0:
        a("L_h2:")
        h2_issue(G2)
        a(f"s_add_u32 s{sCnt}, s{sCnt}, 1")
        for i in range(4):
            b = G2 + 4*i
            a(f"s_waitcnt vmcnt({3-i})")
            a(f"ds_write_b128 v{hA+3}, {vr(b,4)} offset:{1024*i}")
            if i == 0:
                a(f"v_max3_u32 v{vT0}, v{b}, v{b+1}, v{b+2}\nv_max_u32 v{vT0}, v{vT0}, v{b+3}")
            else:
                a(f"v_max3_u32 v{vT0}, v{vT0}, v{b}, v{b+1}\nv_max3_u32 v{vT0}, v{vT0}, v{b+2}, v{b+3}")
        a(f"""v_cmp_eq_u32 vcc, -1, v{vT0}
s_bitcmp1_b32 s{sCnt}, 18
s_cbranch_scc1 L_h2_done
s_cbranch_vccz L_h2_done
s_waitcnt lgkmcnt(0)
s_branch L_h2
L_h2_done:""")
    elif h2mode == 1:
        a("L_h2:")
        h2_issue(G2)
        a(f"s_add_u32 s{sCnt}, s{sCnt}, 1")
        h2_check(G2, 0)
        a(f"""s_bitcmp1_b32 s{sCnt}, 18
s_cbranch_scc1 L_h2_done
s_cbranch_vccnz L_h2
L_h2_done:""")
        h2_write(G2)
    elif h2mode == 2:
        G3 = G2 + 16
        h2_issue(G2)
        a("L_h2:")
        h2_issue(G3)
        a(f"s_add_u32 s{sCnt}, s{sCnt}, 1")
        h2_check(G2, 4)
        a(f"s_cbranch_vccz L_h2_a")
        h2_issue(G2)
        h2_check(G3, 4)
        a(f"""s_bitcmp1_b32 s{sCnt}, 18
s_cbranch_scc1 L_h2_b
s_cbranch_vccnz L_h2
L_h2_b:""")
        h2_write(G3)
        a("s_branch L_h2_done\nL_h2_a:")
        h2_write(G2)
        a("L_h2_done:")
    set_flag(F_STAGE, vT1)
    stamp(8)
    stamp_val(12, sCnt)
    a(f"""s_cmp_lg_u32 s{sJ}, 0
s_cbranch_scc1 L_fin
v_mov_b32 v{vT0}, 0
s_mov_b32 s{sT}, {W_E}
s_mov_b64 exec, 1
buffer_store_dwordx2 {vr(hX+4,2)}, v{vT0}, {sr(SWS,4)}, s{sT} offen
s_mov_b64 exec, -1
L_fin:""")
    if stamps:
        a(f"""
s_load_dwordx2 s[16:17], s[0:1], 48
s_waitcnt lgkmcnt(0)
s_add_u32 s{SST}, s16, {STAMP_OFF}
s_addc_u32 s{SST+1}, s17, 0
s_mov_b32 s{SST+2}, {256*16*64}
s_mov_b32 s{SST+3}, 0x20000
s_lshl_b32 s{sT}, s2, 4
s_add_u32 s{sT}, s{sT}, s{sW}
s_lshl_b32 s{sT}, s{sT}, 6
v_lshlrev_b32 v{vT1}, 2, v{vL}
s_mov_b64 exec, 0xffff
buffer_store_dword v{vS}, v{vT1}, {sr(SST,4)}, s{sT} offen
""")
    a("L_end:\ns_endpgm")
    return a, k

def build(**kw):
    a, k = gen(**kw)
    txt = '.amdgcn_target "amdgcn-amd-amdhsa--gfx950"\n.text\n' + a.text()
    hdr = HEADER + f"; @launch grid=(256,1,1) block=(640,1,1) lds={LDS_BYTES}\n"
    return hdr + txt + descriptor(k, NVGPR, sgpr=80)

if __name__ == '__main__':
    V = eval(open(sys.argv[1]).read())
    for n, kw in V.items():
        open(n + '.s', 'w').write(build(**kw))
    print(' '.join(n + '.s' for n in V))
```
